```python
import torch

def _softmax(x, axis=-1):
    return torch.softmax(x, dim=axis)
def _gelu(x):
    return torch.nn.functional.gelu(x, approximate="tanh")
def _silu(x):
    return torch.nn.functional.silu(x)
def _sigmoid(x):
    return torch.sigmoid(x)
def _layernorm(x, axis=-1, eps=1e-5):
    m = x.mean(dim=axis, keepdim=True)
    v = x.var(dim=axis, keepdim=True, unbiased=False)
    return (x - m) / torch.sqrt(v + eps)
def _scatter_add(tgt, idx, src, axis=0):
    return tgt.clone().index_add_(axis, idx, src)
def _segment_sum(src, seg, n):
    out = torch.zeros((n,) + src.shape[1:], dtype=src.dtype)
    return out.index_add_(0, seg, src)
def _pad(x, pw):
    flat = tuple(v for pair in reversed(pw) for v in pair)
    return torch.nn.functional.pad(x, flat)

kernel_name = 'interleave_layers__linear_kernel_hedgehog__dense_activation_squared_relu__prompt'

def setup_inputs():

    _w = (lambda a: (lambda t: t.to(torch.bfloat16) if t.is_floating_point() else t)(torch.as_tensor(a)))
    def _A_setup():
        B, S, D, H = 1, 2048, 640, 32
        Dh = D // H
        return {
            "x": _w((lambda *s: torch.randn(*s, dtype=torch.bfloat16) * 0.05)(B, S, D)),
            "wqkv": _w((lambda *s: torch.randn(*s, dtype=torch.bfloat16) * 0.2)(D, 3 * D)),
            "w_phi": _w((lambda *s: torch.randn(*s, dtype=torch.bfloat16) * 0.2)(H, Dh, Dh) * (Dh ** -0.5)),
            "wo": _w((lambda *s: torch.randn(*s, dtype=torch.bfloat16) * 0.05)(D, D)),
        }
    _A_in = _A_setup()

    def _B_setup():
        B, S, D, F = 1, 2048, 640, 1536
        return {
            "x": _w((lambda *s: torch.randn(*s, dtype=torch.bfloat16) * 0.05)(B, S, D)),
            "w1": _w((lambda *s: torch.randn(*s, dtype=torch.bfloat16) * 0.05)(D, F)),
            "b1": _w((lambda *s: torch.randn(*s, dtype=torch.bfloat16) * 0.2)(F)),
            "w2": _w((lambda *s: torch.randn(*s, dtype=torch.bfloat16) * 0.05)(F, D)),
            "b2": _w((lambda *s: torch.randn(*s, dtype=torch.bfloat16) * 0.8)(D)),
        }
    _B_in = _B_setup()

    return {
        "A_x": _A_in["x"],
        "A_wqkv": _A_in["wqkv"],
        "A_w_phi": _A_in["w_phi"],
        "A_wo": _A_in["wo"],
        "B_x": _B_in["x"],
        "B_w1": _B_in["w1"],
        "B_b1": _B_in["b1"],
        "B_w2": _B_in["w2"],
        "B_b2": _B_in["b2"],
    }

def reference(A_x, A_wqkv, A_w_phi, A_wo, B_x, B_w1, B_b1, B_w2, B_b2):
    def _A_ref(x, wqkv, w_phi, wo):
        B, S, D = x.shape
        H = 32; Dh = D // H
        qkv = (lambda x, *d: x.permute(*d))((x @ wqkv).reshape(B, S, 3, H, Dh), 2, 0, 3, 1, 4)
        q, k, v = qkv[0], qkv[1], qkv[2]
        pq = torch.einsum("bhsd,hdf->bhsf", q, w_phi)
        pk = torch.einsum("bhsd,hdf->bhsf", k, w_phi)
        phi_q = torch.concatenate([_softmax(pq, axis=-1), _softmax(-pq, axis=-1)], axis=-1)
        phi_k = torch.concatenate([_softmax(pk, axis=-1), _softmax(-pk, axis=-1)], axis=-1)
        kv = torch.einsum("bhsf,bhsd->bhfd", phi_k, v)
        z  = torch.einsum("bhsf->bhf", phi_k)
        num = torch.einsum("bhqf,bhfd->bhqd", phi_q, kv)
        den = torch.einsum("bhqf,bhf->bhq", phi_q, z)[..., None] + 1e-6
        o = num / den
        return (lambda x, *d: x.permute(*d))(o, 0, 2, 1, 3).reshape(B, S, D) @ wo

    def _B_ref(x, w1, b1, w2, b2):
        h = torch.einsum("bsd,df->bsf", x, w1) + b1
        zero = torch.zeros_like(h)
        r = torch.where(h > zero, h, zero)
        h = r * r
        out = torch.einsum("bsf,fd->bsd", h, w2) + b2
        return out

    x = A_x
    x = x + _A_ref(_layernorm(x, axis=-1), A_wqkv, A_w_phi, A_wo)
    x = x + _B_ref(_layernorm(x, axis=-1), B_w1, B_b1, B_w2, B_b2)
    x = x + _A_ref(_layernorm(x, axis=-1), A_wqkv, A_w_phi, A_wo)
    x = x + _B_ref(_layernorm(x, axis=-1), B_w1, B_b1, B_w2, B_b2)
    return x
```

```python
import re

_REG = re.compile(r'^(-|\|)?(?:abs\()?([vas])(?:(\d+)|\[(\d+):(\d+)\])\)?\|?$')


def regs_of(op):
    op = op.strip()
    m = _REG.match(op)
    if m:
        kind = m.group(2)
        if m.group(3) is not None:
            return [(kind, int(m.group(3)))]
        return [(kind, r) for r in range(int(m.group(4)), int(m.group(5)) + 1)]
    if op == 'vcc':
        return [('s', 'vcc_lo'), ('s', 'vcc_hi')]
    if op in ('vcc_lo', 'vcc_hi', 'm0', 'exec_lo', 'exec_hi'):
        return [('s', op)]
    if op == 'exec':
        return [('s', 'exec_lo'), ('s', 'exec_hi')]
    return []


def split_ops(text):
    out, depth, cur = [], 0, ''
    for ch in text:
        if ch in '[(':
            depth += 1
        if ch in '])':
            depth -= 1
        if ch == ',' and depth == 0:
            out.append(cur.strip())
            cur = ''
        else:
            cur += ch
    if cur.strip():
        out.append(cur.strip())
    return out


TRANS = ('v_exp_f32', 'v_log_f32', 'v_rcp_f32', 'v_rsq_f32', 'v_sqrt_f32', 'v_sin_f32', 'v_cos_f32')


class Inst:
    __slots__ = ('text', 'mn', 'cls', 'reads', 'writes', 'a', 'b', 'c', 'passes', 'data', 'wide', 'lds', 'states',
                 'tag', 'hidden')

    def __init__(self, text, tag=None, hidden=False):
        self.text = text
        self.tag = tag
        self.hidden = hidden
        self.a = self.b = self.c = self.data = ()
        self.passes = 0
        self.wide = False
        self.lds = False
        self.states = 1
        body = text.split(';')[0].strip()
        if body.endswith(':') or body.startswith('.') or not body:
            self.mn, self.cls, self.reads, self.writes, self.states = body, 'label', [], [], 0
            return
        parts = body.split(None, 1)
        mn = parts[0]
        for suf in ('_e32', '_e64'):
            if mn.endswith(suf):
                mn = mn[:-len(suf)]
        self.mn = mn
        ops = split_ops(parts[1]) if len(parts) > 1 else []
        mods = ''
        if ops and not mn.startswith('s_waitcnt') and not mn.startswith('s_getreg'):
            last = ops[-1].split(None, 1)
            if len(last) > 1:
                ops[-1], mods = last[0], last[1]
        R = [regs_of(o) for o in ops]
        flat = lambda xs: [r for x in xs for r in x]
        if mn.startswith('v_mfma'):
            self.cls = 'mfma'
            self.writes, self.a, self.b, self.c = R[0], R[1], R[2], R[3]
            self.reads = flat(R[1:])
            self.passes = 8 if '32x32' in mn else 4
        elif mn.startswith('v_'):
            self.cls = 'valu'
            if mn.startswith('v_permlane') or mn == 'v_swap_b32':
                self.writes = flat(R)
                self.reads = flat(R)
            elif mn in ('v_add_co_u32', 'v_sub_co_u32', 'v_addc_co_u32', 'v_subb_co_u32'):
                self.writes = flat(R[:2])
                self.reads = flat(R[2:])
            elif mn == 'v_nop':
                self.writes, self.reads = [], []
            else:
                self.writes = R[0]
                self.reads = flat(R[1:])
                if mn.startswith(('v_fmac', 'v_dot2c', 'v_writelane')):
                    self.reads = self.reads + R[0]
        elif mn.startswith('buffer_load'):
            self.cls = 'vmem'
            if re.search(r'\blds\b', mods):
                self.lds = True
                self.writes = []
                self.reads = flat(R) + [('s', 'm0')]
            else:
                self.writes = R[0]
                self.reads = flat(R[1:])
        elif mn.startswith('buffer_store'):
            self.cls = 'vmem'
            self.writes = []
            self.reads = flat(R)
            self.data = R[0]
            self.wide = mn.endswith(('x3', 'x4'))
        elif mn.startswith('buffer_atomic'):
            self.cls = 'vmem'
            self.reads = flat(R)
            self.writes = R[0] if re.search(r'\bsc0\b', mods) else []
        elif mn in ('buffer_wbl2', 'buffer_inv'):
            self.cls = 'vmem'
            self.reads, self.writes = [], []
        elif mn.startswith('ds_read'):
            self.cls = 'ds'
            self.writes = R[0]
            self.reads = flat(R[1:])
        elif mn.startswith('ds_write'):
            self.cls = 'ds'
            self.writes = []
            self.reads = flat(R)
            self.data = flat(R[1:])
        elif mn.startswith(('s_load', 's_memrealtime', 's_memtime')):
            self.cls = 'smem'
            self.writes = R[0]
            self.reads = flat(R[1:])
        elif mn == 's_waitcnt':
            self.cls = 'wait'
            self.reads, self.writes = [], []
        elif mn == 's_nop':
            self.cls = 'nop'
            self.reads, self.writes = [], []
            self.states = int(ops[0]) + 1
        elif mn.startswith(('s_cmp', 's_bitcmp')):
            self.cls = 'salu'
            self.reads, self.writes = flat(R), []
        elif mn.startswith(('s_cbranch', 's_branch', 's_barrier', 's_endpgm', 's_setprio', 's_sleep')):
            self.cls = 'ctrl'
            self.reads, self.writes = [], []
        elif mn.startswith('s_'):
            self.cls = 'salu'
            self.writes = R[0]
            self.reads = flat(R[1:])
            if 'saveexec' in mn:
                self.writes = self.writes + regs_of('exec')
        else:
            raise ValueError('unknown instruction: ' + text)


def _ov(x, y):
    return not set(x).isdisjoint(y)


def needed_states(p, c):
    n = 0
    vw = [r for r in p.writes if r[0] in 'va']
    sw = [r for r in p.writes if r[0] == 's']
    if p.cls == 'valu':
        dl = p.mn.startswith('v_dot')
        if c.cls == 'mfma' and _ov(vw, c.reads):
            n = max(n, 3 if dl else 2)
        if c.cls == 'valu':
            if c.mn.startswith('v_permlane') and _ov(vw, c.reads):
                n = max(n, 2)
            if 'dpp' in c.text and _ov(vw, c.reads):
                n = max(n, 2)
            if c.mn.startswith(('v_readfirstlane', 'v_readlane')) and _ov(vw, c.reads):
                n = max(n, 1)
            if p.mn in TRANS and _ov(vw, c.reads):
                n = max(n, 1)
            if _ov(sw, c.reads):
                n = max(n, 4 if c.mn.startswith(('v_readlane', 'v_writelane')) else 2)
            if dl and (_ov(vw, c.reads) or _ov(vw, c.writes)):
                chain = c.mn == p.mn and c.mn.startswith('v_dot2c') and not _ov(vw, c.reads[:-len(c.writes)])
                n = max(n, 0 if chain else 3)
        if c.cls in ('vmem', 'ds'):
            if dl and _ov(vw, c.reads):
                n = max(n, 3)
            if p.mn in TRANS and _ov(vw, c.reads):
                n = max(n, 1)
        if c.cls == 'vmem' and _ov(sw, c.reads):
            n = max(n, 5)
    if p.cls == 'mfma':
        full = {4: 8, 8: 12}[p.passes]
        if c.cls == 'mfma':
            if _ov(vw, c.a) or _ov(vw, c.b):
                n = max(n, full)
            if _ov(vw, c.c):
                same = list(c.c) == list(p.writes) and c.passes == p.passes
                n = max(n, 0 if same else full - 2)
            elif _ov(vw, c.writes):
                n = max(n, full - 2)
        elif c.cls in ('valu', 'vmem', 'ds'):
            if _ov(vw, c.reads) or _ov(vw, c.writes):
                n = max(n, full)
            if c.cls == 'valu' and _ov(p.c, c.writes):
                n = max(n, p.passes - 1)
    if p.cls == 'vmem' and p.wide and _ov(p.data, c.writes):
        n = max(n, 2)
    if p.cls == 'salu' and ('s', 'm0') in p.writes and c.cls == 'vmem' and c.lds:
        n = max(n, 1)
    return n


class Asm:
    def __init__(self):
        self.out = []
        self.vm = []
        self.lg = []
        self.nlabel = 0
        self.max_vm = 0

    def label(self, base='L'):
        self.nlabel += 1
        return f'{base}_{self.nlabel}'

    def _emit_raw(self, ins):
        need, dist = 0, 0
        for p in reversed(self.out):
            if dist >= 12:
                break
            if p.cls != 'label':
                need = max(need, needed_states(p, ins) - dist)
            dist += p.states
        while need > 0:
            k = min(need, 16)
            self.out.append(Inst(f's_nop {k - 1}'))
            need -= k
        self.out.append(ins)

    def _wait(self, vm=None, lg=None):
        parts = []
        if vm is not None:
            vm = min(vm, 63)
            if len(self.vm) > vm:
                parts.append(f'vmcnt({vm})')
                self.vm = self.vm[len(self.vm) - vm:] if vm else []
        if lg is not None:
            lg = min(lg, 15)
            if len(self.lg) > lg:
                parts.append(f'lgkmcnt({lg})')
                self.lg = self.lg[len(self.lg) - lg:] if lg else []
        if parts:
            self._emit_raw(Inst('s_waitcnt ' + ' '.join(parts)))

    def _pending(self, queue, touched):
        for k in range(len(queue) - 1, -1, -1):
            if queue[k].writes and _ov(queue[k].writes, touched):
                return len(queue) - 1 - k
        return None

    def __call__(self, text, tag=None, hidden=False):
        if isinstance(text, (list, tuple)):
            for t in text:
                self(t)
            return
        if callable(text):
            text()
            return
        ins = text if isinstance(text, Inst) else Inst(text, tag, hidden)
        if ins.cls == 'wait':
            m = re.search(r'vmcnt\((\d+)\)', ins.text)
            if m and not ins.hidden:
                n = int(m.group(1))
                self.vm = self.vm[len(self.vm) - n:] if n and len(self.vm) > n else ([] if n == 0 else self.vm)
            m = re.search(r'lgkmcnt\((\d+)\)', ins.text)
            if m and not ins.hidden:
                n = int(m.group(1))
                self.lg = self.lg[len(self.lg) - n:] if n and len(self.lg) > n else ([] if n == 0 else self.lg)
            self._emit_raw(ins)
            return
        if ins.cls != 'label':
            touched = list(ins.reads) + list(ins.writes)
            same_q_ok = 'd16' in ins.mn
            vm = self._pending(self.vm, touched)
            lg = self._pending(self.lg, touched)
            if same_q_ok and ins.cls == 'ds':
                lg = self._pending(self.lg, ins.reads)
            if lg is not None and any(q.cls == 'smem' for q in self.lg):
                lg = 0
            self._wait(vm, lg)
        self._emit_raw(ins)
        if not ins.hidden:
            if ins.cls == 'vmem':
                self.vm.append(ins)
                self.max_vm = max(self.max_vm, len(self.vm))
                assert len(self.vm) <= 62, 'too many vector memory operations in flight: ' + ins.text
            elif ins.cls in ('ds', 'smem'):
                self.lg.append(ins)

    def wait_tag(self, tag):
        for k in range(len(self.vm) - 1, -1, -1):
            if self.vm[k].tag == tag:
                self._wait(vm=len(self.vm) - 1 - k)
                return

    def wait_lds(self):
        self._wait(lg=0)

    def wait_vm(self):
        self._wait(vm=0)

    def text(self):
        return '\n'.join(('' if i.cls == 'label' else '    ') + i.text for i in self.out)
```

```python
import sys
from collections import defaultdict
from asmlib import Asm, Inst

NAME = 'interleave_layers__linear_kernel_hedgehog__dense_activation_squared_relu__prompt'

WA = 0
W1 = WA + 16 * 153600
WO = W1 + 16 * 122880
W2 = WO + 8 * 102400
CSP = W2 + 8 * 245760
CSP1 = CSP + 16 * 15360
FLA = CSP1 + 16 * 15360
FLB = FLA + 32768
EPO = FLB + 32768
STAMP = 0x780000
KVS = 0x800000
ACT = 0xA00000
WS_USED = 0x1A00000
XQ, OB, X1, HB, ST0, ST1, FL = 0, 163840, 327680, 491520, 884736, 892928, 901120
OOB = 0x40000000

L_WQ = 102400
L_SCR = 92160
L_PV = 63488
PV_PITCH = 304
L_CSQ, L_CS1, L_B1, L_B2, L_KVI, L_RANK = 153600, 154112, 154624, 155136, 155648, 163328
LDS_BYTES = 163840

WS, SA, SB, SC, OUT = 's[4:7]', 's[8:11]', 's[12:15]', 's[16:19]', 's[20:23]'
sW, sG, sR, sSLOW, sTAG, sC16, sC8, sTG2, sT4L, sACT = 's24', 's25', 's26', 's27', 's[28:29]', 's30', 's31', 's32', 's33', 's34'
sT0, sT1, sT2, sT3, sT4, sT5 = 's35', 's60', 's61', 's62', 's63', 's64'
sCNT = 's65'
sXLD, sSTLD, sOSTA, sOSTB, sHST = 's66', 's67', 's68', 's69', 's70'
sTT = ['s71', 's72', 's73', 's74']
sXSTA, sXSTH, sSTST = 's75', 's76', 's77'
sFXST, sFXLD, sFOST, sFOLD = 's78', 's79', 's80', 's81'
sWA, sW1, sWO, sW2 = 's82', 's83', 's84', 's85'
sKVST, sKVLD, sNA, sNB = 's86', 's87', 's88', 's89'
sLB = ['s90', 's91', 's92', 's93']
sWL = 's94'
sEPO = 's95'
sSTAMP = 's[96:97]'
P_X, P_WQKV, P_WPHI, P_WO, P_W1, P_B1, P_W2, P_B2, P_OUT, P_DBG, P_WS = 36, 38, 40, 42, 46, 48, 50, 52, 54, 56, 58

ACC = 160
RES = 208
vL16, vL8, vTAG, vSTAMP = 'v218', 'v219', 'v[220:221]', 'v222'
vA0, vA1, vA2 = 'v223', 'v224', 'v225'
vNM, vRS = 226, 228
T = 230


def v(n, k=1):
    return f'v{n}' if k == 1 else f'v[{n}:{n + k - 1}]'


def a(n, k=1):
    return f'a{n}' if k == 1 else f'a[{n}:{n + k - 1}]'


def lanemask(f):
    m = 0
    for l in range(64):
        if f(l):
            m |= 1 << l
    return m


class Gen:
    def __init__(self, stamps=False, stop=None, fake_xcc=None):
        self.A = Asm()
        self.stamps = stamps
        self.stop = stop
        self.fake_xcc = fake_xcc
        self.nstamp = 0
        self.stamp_names = []
        self.tail = []

    def smask(self, dst_lo, m):
        A = self.A
        A(f's_mov_b32 s{dst_lo}, {m & 0xffffffff:#x}')
        A(f's_mov_b32 s{dst_lo + 1}, {m >> 32:#x}')

    def exec_set(self, m):
        if m == (1 << 64) - 1:
            return ['s_mov_b64 exec, -1']
        if m <= 64:
            return [f's_mov_b64 exec, {m}']
        return [f's_mov_b32 exec_lo, {m & 0xffffffff:#x}', f's_mov_b32 exec_hi, {m >> 32:#x}']

    def srd(self, base, ptr, nbytes):
        A = self.A
        A(f's_mov_b32 s{base}, s{ptr}')
        A(f's_mov_b32 s{base + 1}, s{ptr + 1}')
        A(f's_mov_b32 s{base + 2}, {nbytes}')
        A(f's_mov_b32 s{base + 3}, 0x20000')

    def stamp(self, name):
        if not self.stamps:
            return
        A = self.A
        A(f's_memrealtime {sSTAMP}', hidden=True)
        A('s_waitcnt lgkmcnt(0)')
        A(f'v_writelane_b32 {vSTAMP}, s96, {self.nstamp}')
        self.stamp_names.append(name)
        self.nstamp += 1

    def maybe_stop(self, name):
        if self.stop == name:
            self.A('s_branch L_finish')

    def lane_iq(self, vi, vq):
        A = self.A
        A(f'v_bfe_u32 {vi}, {vL16}, 4, 4')
        A(f'v_lshrrev_b32 {vq}, 8, {vL16}')

    def frag_loads(self, dsts, sbase, offs, flags='', tag=None, tmp=sT0):
        out, cur = [], None
        for d, o in zip(dsts, offs):
            grp = []
            if cur is None or not (0 <= o - cur <= 3072):
                cur = o
                grp.append(f's_add_u32 {tmp}, {sbase}, {o}')
            grp.append(Inst(f'buffer_load_dwordx4 {d}, {vL16}, {WS}, {tmp} offen offset:{o - cur} {flags}'.rstrip(), tag))
            out.append(grp)
        return out

    def dma(self, sgbase, slbase, pieces, tag, tmp=sT1, flags='sc1'):
        out, cur = [], None
        for o in pieces:
            grp = []
            if cur is None or not (0 <= o - cur <= 3072):
                cur = o
                grp.append(f's_add_u32 m0, {slbase}, {o}')
                grp.append(f's_add_u32 {tmp}, {sgbase}, {o}')
            grp.append(Inst(f'buffer_load_dwordx4 {vL16}, {WS}, {tmp} offen offset:{o - cur} {flags} lds', tag))
            out.append(grp)
        return out

    def flag_store(self, soff, imm, device=False):
        A = self.A
        A('s_waitcnt vmcnt(0)')
        A('s_mov_b64 exec, 1')
        if device:
            A(f'buffer_store_dwordx2 {vTAG}, off, {WS}, {soff} offset:{imm} sc1')
        else:
            slow, back = A.label('L_slowpub'), A.label('L_pubdone')
            A(f's_cmp_lg_u32 {sSLOW}, 0')
            A(f's_cbranch_scc1 {slow}')
            A(f'buffer_store_dwordx2 {vTAG}, off, {WS}, {soff} offset:{imm}')
            A(f'{back}:')
            self.tail += [f'{slow}:', 'buffer_wbl2 sc1', 's_waitcnt vmcnt(0)',
                          f'buffer_store_dwordx2 {vTAG}, off, {WS}, {soff} offset:{imm} sc1', f's_branch {back}']
        A('s_mov_b64 exec, -1')

    def poll(self, vaddr, soff, imm, mask, tmp, local=True):
        A = self.A
        loop, done = A.label('L_poll'), A.label('L_polled')
        A(self.exec_set(mask))
        A(f's_mov_b32 {sCNT}, 0x100000')
        A(f'{loop}:')
        A(f'buffer_load_dwordx2 {v(tmp, 2)}, {vaddr}, {WS}, {soff} offen offset:{imm} sc1')
        A(f's_sub_u32 {sCNT}, {sCNT}, 1')
        A(f's_cbranch_scc1 {done}')
        A('s_waitcnt vmcnt(0)')
        A(f'v_cmp_ne_u64 vcc, {sTAG}, {v(tmp, 2)}')
        A(f's_cbranch_vccnz {loop}')
        A(f'{done}:')
        A('s_mov_b64 exec, -1')
        if local:
            slow, back = A.label('L_slowacq'), A.label('L_acqdone')
            A(f's_cmp_lg_u32 {sSLOW}, 0')
            A(f's_cbranch_scc1 {slow}')
            A(f'{back}:')
            self.tail += [f'{slow}:', 'buffer_inv sc1', 's_waitcnt vmcnt(0)', f's_branch {back}']

    def rowsum4(self, regs, tmp):
        out = []
        for swap in ('v_permlane16_swap_b32', 'v_permlane32_swap_b32'):
            for k, r in enumerate(regs):
                out.append(f'v_mov_b32 {v(tmp + k)}, {v(r)}')
            for k, r in enumerate(regs):
                out.append(f'{swap} {v(r)}, {v(tmp + k)}')
            for k, r in enumerate(regs):
                out.append(f'v_add_f32 {v(r)}, {v(r)}, {v(tmp + k)}')
        return out

    def sel_mats(self, dst, tmp):
        A = self.A
        self.lane_iq(v(tmp), v(tmp + 1))
        A(f'v_lshrrev_b32 {v(tmp + 2)}, 2, {v(tmp)}')
        A(f'v_cmp_eq_u32 vcc, {v(tmp + 2)}, {v(tmp + 1)}')
        A(f'v_and_b32 {v(tmp + 2)}, 1, {v(tmp)}')
        A(f'v_lshlrev_b32 {v(tmp + 2)}, 4, {v(tmp + 2)}')
        A(f'v_mov_b32 {v(tmp + 1)}, 0x3f80')
        A(f'v_lshlrev_b32 {v(tmp + 2)}, {v(tmp + 2)}, {v(tmp + 1)}')
        A(f'v_cndmask_b32 {v(tmp + 2)}, 0, {v(tmp + 2)}, vcc')
        A(f'v_and_b32 {v(tmp)}, 2, {v(tmp)}')
        A(f'v_cmp_eq_u32 vcc, 0, {v(tmp)}')
        for r in (2, 3, 4, 5):
            A(f'v_mov_b32 {v(dst + r)}, 0')
        A(f'v_cndmask_b32 {v(dst)}, 0, {v(tmp + 2)}, vcc')
        A(f'v_cndmask_b32 {v(dst + 1)}, {v(tmp + 2)}, 0, vcc')
        A(f'v_mov_b32 {v(dst + 6)}, {v(dst)}')
        A(f'v_mov_b32 {v(dst + 7)}, {v(dst + 1)}')

    def run(self, mfmas, slots):
        A = self.A
        for k, m in enumerate(mfmas):
            A(slots.get(k, []))
            A(m)
        for k in sorted(slots):
            if k >= len(mfmas):
                A(slots[k])

    @staticmethod
    def spread(slots, groups, start, step):
        pos = start
        for g in groups:
            slots[int(pos)].append(g)
            pos += step
        return pos

    def prologue(self):
        A = self.A
        A('s_cmp_ge_u32 s2, 256')
        A('s_cbranch_scc1 L_end')
        A('s_load_dwordx16 s[36:51], s[0:1], 0')
        A('s_load_dwordx8 s[52:59], s[0:1], 64')
        if self.stamps:
            A(f'v_mov_b32 {vSTAMP}, 0')
            self.stamp('start')
        A('s_getpc_b64 s[8:9]')
        A('L_pc:')
        A('s_mov_b32 s10, L_end-L_pc')
        A('s_mov_b32 s11, 0x20000')
        A('v_lshlrev_b32 v1, 7, v0')
        A(f's_mov_b32 {sT0}, 32768')
        A(f'buffer_load_dword v2, v1, {SA}, 0 offen')
        A(f'buffer_load_dword v3, v1, {SA}, {sT0} offen')
        if self.fake_xcc is None:
            A(f's_getreg_b32 {sG}, hwreg(HW_REG_XCC_ID, 0, 4)')
        else:
            A(self.fake_xcc)
        A('v_lshrrev_b32 v4, 6, v0')
        A('v_and_b32 v0, 63, v0')
        A(f'v_readfirstlane_b32 {sW}, v4')
        A(f'v_lshlrev_b32 {vL16}, 4, v0')
        A(f'v_lshlrev_b32 {vL8}, 3, v0')
        vi, vq = 'v4', 'v5'
        self.lane_iq(vi, vq)
        sHP, sJ, sU, sKS, sPART = 's66', 's67', 's68', 's69', 's70'
        A(f's_lshr_b32 {sHP}, s2, 4')
        A(f's_and_b32 {sJ}, s2, 15')
        A(f's_lshl_b32 {sU}, {sJ}, 2')
        A(f's_add_u32 {sU}, {sU}, {sW}')
        A(f's_min_u32 {sU}, {sU}, 59')
        A(f's_mul_i32 {sKS}, {sU}, 21846')
        A(f's_lshr_b32 {sKS}, {sKS}, 16')
        A(f's_mul_i32 {sT0}, {sKS}, 3')
        A(f's_sub_u32 {sPART}, {sU}, {sT0}')
        A(f'v_lshrrev_b32 v6, 2, {vi}')
        A(f'v_and_b32 v7, 3, {vi}')
        A('v_lshl_add_u32 v6, v6, 3, v7')
        A('v_mul_u32_u24 v8, 3840, v6')
        A(f'v_lshl_add_u32 v9, {vq}, 3, v8')
        A(f'v_lshl_add_u32 v8, {vq}, 4, v8')
        A('s_waitcnt lgkmcnt(0)')
        self.srd(4, P_WS, WS_USED)
        self.srd(16, P_DBG, 256)
        A(f's_add_u32 s92, s{P_WS}, {EPO}')
        A(f's_addc_u32 s93, s{P_WS + 1}, 0')
        A(f's_load_dword {sEPO}, s[92:93], 0')
        A(f's_lshl_b32 {sT0}, {sG}, 5')
        A(f's_cmp_lt_u32 {sG}, 8')
        A(f's_cselect_b32 {sT0}, {sT0}, 16')
        A(f's_cmp_eq_u32 {sW}, 0')
        A(f's_cselect_b32 {sT0}, {sT0}, {OOB}')
        A('v_mov_b32 v10, 1')
        A('s_mov_b64 exec, 1')
        A(f'buffer_atomic_add v10, off, {SC}, {sT0} sc0 sc1')
        A('s_mov_b64 exec, -1')
        self.srd(8, P_WPHI, 25600)
        self.srd(12, P_WQKV, 640 * 3840)
        A(f's_mul_i32 {sT0}, {sHP}, 1600')
        A(f'buffer_load_dwordx4 v[12:15], {vL16}, {SA}, {sT0} offen')
        A(f'buffer_load_dwordx4 v[16:19], {vL16}, {SA}, {sT0} offen offset:1024')
        A(f's_mul_i32 {sT0}, {sKS}, {32 * 3840}')
        A(f's_mul_i32 {sT1}, {sPART}, 1280')
        A(f's_mul_i32 {sT2}, {sHP}, 80')
        A(f's_add_u32 {sT0}, {sT0}, {sT1}')
        A(f's_add_u32 {sT0}, {sT0}, {sT2}')
        A(f's_add_u32 {sT1}, {sT0}, {4 * 3840}')
        A(f'buffer_load_dwordx4 v[20:23], v8, {SB}, {sT0} offen')
        A(f'buffer_load_dwordx4 v[24:27], v8, {SB}, {sT1} offen')
        A(f'buffer_load_dwordx2 v[28:29], v9, {SB}, {sT0} offen offset:64')
        A(f'buffer_load_dwordx2 v[30:31], v9, {SB}, {sT1} offen offset:64')
        self.srd(8, P_X, 2048 * 1280)
        A('v_min_u32 v11, 19, v0')
        A('v_lshlrev_b32 v11, 7, v11')
        A(f's_mul_i32 {sT0}, {sG}, 327680')
        A(f's_lshr_b32 {sT1}, s2, 3')
        A(f's_mul_i32 {sT1}, {sT1}, 10240')
        A(f's_mul_i32 {sT2}, {sW}, 2560')
        A(f's_add_u32 {sT0}, {sT0}, {sT1}')
        A(f's_add_u32 {sT0}, {sT0}, {sT2}')
        A(f'buffer_load_dword v11, v11, {SA}, {sT0} offen')
        self.srd(12, P_W1, 640 * 3072)
        A('v_mul_u32_u24 v8, 3072, v6')
        A(f'v_lshl_add_u32 v8, {vq}, 4, v8')
        A(f's_mul_i32 {sT0}, {sKS}, {32 * 3072}')
        A(f's_lshl_b32 {sT1}, {sPART}, 6')
        A(f's_mul_i32 {sT2}, {sHP}, 192')
        A(f's_add_u32 {sT0}, {sT0}, {sT1}')
        A(f's_add_u32 {sT0}, {sT0}, {sT2}')
        A(f's_add_u32 {sT1}, {sT0}, {4 * 3072}')
        A(f'buffer_load_dwordx4 v[32:35], v8, {SB}, {sT0} offen')
        A(f'buffer_load_dwordx4 v[36:39], v8, {SB}, {sT1} offen')
        sU2, sC, sBASE, sAL, sBE, sGA, sDST = 's71', 's72', 's73', 's74', 's75', 's76', 's77'
        A(f's_and_b32 {sU2}, s2, 31')
        A(f's_lshl_b32 {sT0}, {sW}, 5')
        A(f's_add_u32 {sU2}, {sU2}, {sT0}')
        A(f's_lshr_b32 {sC}, s2, 5')
        A(f's_mul_i32 {sT0}, {sU2}, 13108')
        A(f's_lshr_b32 {sT0}, {sT0}, 16')
        A(f's_mul_i32 {sT1}, {sT0}, 5')
        A(f's_sub_u32 {sT1}, {sU2}, {sT1}')
        A(f's_mul_i32 {sT0}, {sT0}, 160')
        A(f's_mul_i32 {sT2}, {sT1}, 40')
        A(f's_cmp_eq_u32 {sT1}, 4')
        A(f's_cselect_b32 {sT2}, 16, {sT2}')
        A(f's_cselect_b32 {sAL}, 80, 20')
        A(f's_cselect_b32 {sBE}, 40, 8')
        A(f's_cselect_b32 {sGA}, 20, 4')
        A(f's_add_u32 {sBASE}, {sT0}, {sT2}')
        A(f's_mul_i32 {sDST}, {sC}, 102400')
        A(f's_add_u32 {sDST}, {sDST}, {WO}')
        A(f's_mul_i32 {sT3}, {sC}, 245760')
        A(f's_add_u32 {sT3}, {sT3}, {W2 - 20 * 5120}')
        A(f's_sub_u32 {sT0}, {sU2}, 20')
        A(f's_lshl_b32 {sT0}, {sT0}, 5')
        A(f's_cmp_lt_u32 {sU2}, 20')
        A(f's_cselect_b32 {sBASE}, {sBASE}, {sT0}')
        A(f's_cselect_b32 {sAL}, {sAL}, 16')
        A(f's_cselect_b32 {sBE}, {sBE}, 8')
        A(f's_cselect_b32 {sGA}, {sGA}, 4')
        A(f's_cselect_b32 {sDST}, {sDST}, {sT3}')
        A(f's_cselect_b32 s12, s{P_WO}, s{P_W2}')
        A(f's_cselect_b32 s13, s{P_WO + 1}, s{P_W2 + 1}')
        A(f's_mov_b32 {sT0}, {640 * 1280}')
        A(f's_cselect_b32 s14, {sT0}, {1536 * 1280}')
        A(f's_mul_i32 {sT0}, {sU2}, 5120')
        A(f's_add_u32 {sDST}, {sDST}, {sT0}')
        A(f'v_lshrrev_b32 v8, 3, {vi}')
        A(f'v_mul_lo_u32 v8, v8, {sAL}')
        A(f'v_bfe_u32 v9, {vi}, 2, 1')
        A(f'v_mul_lo_u32 v9, v9, {sBE}')
        A('v_add3_u32 v8, v8, v9, v7')
        A('v_mul_u32_u24 v8, 1280, v8')
        A(f'v_lshl_add_u32 v9, {vq}, 3, v8')
        A(f'v_lshl_add_u32 v8, {vq}, 4, v8')
        A(f's_mul_i32 {sBASE}, {sBASE}, 1280')
        A(f's_mul_i32 {sGA}, {sGA}, 1280')
        A(f's_mul_i32 {sT0}, {sC}, 160')
        A(f's_add_u32 {sBASE}, {sBASE}, {sT0}')
        A(f's_cmp_lt_u32 {sU2}, 68')
        A(f's_cselect_b32 {sBASE}, {sBASE}, {OOB}')
        A(f's_cselect_b32 {sDST}, {sDST}, {OOB}')
        A(f's_bitcmp1_b32 {sC}, 0')
        A(f's_cselect_b32 {sT0}, 32, 0')
        A(f's_cselect_b32 {sT1}, 0, 128')
        A(f's_add_u32 {sT0}, {sT0}, {sBASE}')
        A(f's_add_u32 {sT1}, {sT1}, {sBASE}')
        A(f's_add_u32 {sT2}, {sT0}, {sGA}')
        A(f's_add_u32 {sT3}, {sT1}, {sGA}')
        A(f'buffer_load_dwordx4 v[40:43], v8, {SB}, {sT0} offen')
        A(f'buffer_load_dwordx4 v[44:47], v8, {SB}, {sT2} offen')
        A(f'buffer_load_dwordx4 v[48:51], v8, {SB}, {sT0} offen offset:64')
        A(f'buffer_load_dwordx4 v[52:55], v8, {SB}, {sT2} offen offset:64')
        A(f'buffer_load_dwordx2 v[56:57], v9, {SB}, {sT1} offen')
        A(f'buffer_load_dwordx2 v[58:59], v9, {SB}, {sT3} offen')
        A(f'v_mov_b32 v8, {L_RANK}')
        A(f's_cmp_eq_u32 {sW}, 0')
        A('s_cselect_b64 exec, 1, 0')
        A('ds_write_b32 v8, v10')
        A('s_mov_b64 exec, -1')
        A('s_waitcnt lgkmcnt(0)')
        A('s_barrier')
        A('ds_read_b32 v10, v8')
        A(f's_mul_i32 s28, {sEPO}, 0x19660d')
        A('s_add_u32 s28, s28, 0x3c6ef35f')
        A('s_xor_b32 s29, s28, 0x5bd1e995')
        A('s_mul_i32 s29, s29, 0x2c1b3c6d')
        A('v_mov_b32 v220, s28')
        A('v_mov_b32 v221, s29')
        A(f's_mov_b32 {sSLOW}, 0')
        A(f'v_readfirstlane_b32 {sR}, v10')
        A(f's_cmp_ge_u32 {sR}, 32')
        A('s_cbranch_scc1 L_overflow')
        A(f's_cmp_ge_u32 {sG}, 8')
        A('s_cbranch_scc1 L_overflow')
        A('L_have_role:')
        self.overflow_code()
        self.stamp('rank')
        A(f's_and_b32 {sC16}, {sR}, 15')
        A(f's_and_b32 {sC8}, {sR}, 7')
        A(f's_lshr_b32 {sTG2}, {sR}, 4')
        A(f's_bfe_u32 {sT4L}, {sR}, 0x10003')
        A(f's_lshr_b32 {sT0}, {sR}, 3')
        A(f's_lshl_b32 {sT0}, {sT0}, 2')
        A(f's_add_u32 {sT0}, {sT0}, {sW}')
        A(f's_lshl_b32 {sT1}, {sG}, 4')
        A(f's_add_u32 {sT0}, {sT0}, {sT1}')
        A(f's_mul_i32 {sT0}, {sT0}, {16 * 1280}')
        A(f's_mul_i32 {sT1}, {sC8}, 160')
        A(f's_add_u32 {sT0}, {sT0}, {sT1}')
        A(f's_bitcmp1_b32 {sC8}, 0')
        A(f's_cselect_b32 {sNA}, 32, 0')
        A(f's_cselect_b32 {sNB}, 0, 128')
        A(f's_add_u32 {sNA}, {sNA}, {sT0}')
        A(f's_add_u32 {sNB}, {sNB}, {sT0}')
        A(f'v_mul_u32_u24 v8, 1280, {vi}')
        A(f'v_lshl_add_u32 v9, {vq}, 3, v8')
        A(f'v_lshl_add_u32 v8, {vq}, 4, v8')
        A(f'buffer_load_dwordx4 {v(RES, 4)}, v8, {SA}, {sNA} offen')
        A(f'buffer_load_dwordx4 {v(RES + 4, 4)}, v8, {SA}, {sNA} offen offset:64')
        A(f'buffer_load_dwordx2 {v(RES + 8, 2)}, v9, {SA}, {sNB} offen')
        A(f'buffer_load_dword v10, {vL16}, {SC}, 0 offen sc1')
        A(f's_mul_i32 {sT0}, {sW}, 1664')
        A(f's_add_u32 {sT0}, {sT0}, {L_KVI + 16}')
        A(f'v_add_u32 v8, {sT0}, {vL16}')
        A(f's_cmp_eq_u32 {sPART}, 2')
        A('s_cselect_b64 vcc, 0, -1')
        for r in range(12, 20):
            A(f'v_cndmask_b32 v{r}, 0, v{r}, vcc')
        A('ds_write_b128 v8, v[12:15]')
        A(self.exec_set((1 << 36) - 1))
        A('ds_write_b128 v8, v[16:19] offset:1024')
        A('s_mov_b64 exec, -1')
        A('v_mul_u32_u24 v9, 42, v0')
        A('v_subrev_u32 v12, 40, v9')
        A('v_cmp_gt_u32 vcc, 20, v0')
        A('v_cndmask_b32 v9, v12, v9, vcc')
        A(f'v_add_u32 v9, {sT0}, v9')
        A('v_mov_b32 v12, 0x3f80')
        A(f's_cmp_eq_u32 {sPART}, 2')
        A('s_cselect_b32 exec_lo, -1, 0')
        A('s_cselect_b32 exec_hi, 0xff, 0')
        A('ds_write_b16 v9, v12')
        A('s_mov_b64 exec, -1')
        A(f's_cselect_b32 {sT1}, 4, 0')
        A(f's_sub_u32 {sT0}, {sT0}, {sT1}')
        A(f'v_bfe_u32 v9, {vi}, 2, 1')
        A('v_mul_u32_u24 v9, 10, v9')
        A('v_add_u32 v9, v9, v7')
        A(f'v_lshl_add_u32 v9, v9, 1, {sT0}')
        A(f'v_mul_u32_u24 v12, 160, {vq}')
        A('v_add_u32 v13, v9, v12')
        A('v_add_u32 v12, v13, v12')
        A('s_waitcnt lgkmcnt(0)')
        G0 = 64
        for t in range(3):
            for e in range(8):
                A(f'ds_read_u16 v{G0 + 12 * t + e}, v12 offset:{40 * e + 8 * t}')
            for e in range(4):
                A(f'ds_read_u16 v{G0 + 12 * t + 8 + e}, v13 offset:{1280 + 40 * e + 8 * t}')
        hc = lambda l: (l & 15) >> 3
        mA = lanemask(lambda l: int((l >> 4) == 3) == hc(l))
        mB = lanemask(lambda l: int((l >> 4) >= 2) == hc(l))
        mC = lanemask(lambda l: (l >> 4) < 2 and hc(l) == 1)
        lo2 = lanemask(lambda l: (l & 3) < 2) & 0xffffffff
        hi2 = lanemask(lambda l: (l & 3) >= 2) & 0xffffffff
        self.smask(78, mA)
        self.smask(80, mB)
        self.smask(82, mC)
        A(f's_cmp_eq_u32 {sPART}, 2')
        A(f's_cselect_b32 s84, {hi2:#x}, -1')
        A('s_mov_b32 s85, s84')
        A(f's_cselect_b32 s86, -1, {lo2:#x}')
        A('s_mov_b32 s87, s86')
        B0 = 100
        for t in range(3):
            tv = {0: 's[84:85]', 1: None, 2: 's[86:87]'}[t]
            for grp, (m, e2s) in enumerate((('s[78:79]', (0, 1)), ('s[80:81]', (2, 3)), ('s[82:83]', (4, 5)))):
                if tv:
                    A(f's_and_b64 vcc, {m}, {tv}')
                else:
                    A(f's_mov_b64 vcc, {m}')
                for e2 in e2s:
                    d = B0 + 6 * t + e2
                    s0 = G0 + 12 * t + 2 * e2
                    A(f'v_lshl_or_b32 v{d}, v{s0 + 1}, 16, v{s0}')
                    A(f'v_cndmask_b32 v{d}, 0, v{d}, vcc')
        D0 = 120
        for t in range(3):
            for rt in range(2):
                d = D0 + 8 * t + 4 * rt
                A(f'v_mfma_f32_16x16x32_bf16 {v(d, 4)}, {v(20 + 4 * rt, 4)}, {v(B0 + 6 * t, 4)}, 0')
        for t in range(3):
            for rt in range(2):
                d = D0 + 8 * t + 4 * rt
                A(f'v_mfma_f32_16x16x16_bf16 {v(d, 4)}, {v(28 + 2 * rt, 2)}, {v(B0 + 6 * t + 4, 2)}, {v(d, 4)}')
        ONES = 60
        for r in range(4):
            A(f'v_mov_b32 v{ONES + r}, 0x3f803f80')
        A(f's_mul_i32 {sT0}, {sHP}, 153600')
        A(f's_mul_i32 {sT1}, {sKS}, 5120')
        A(f's_mul_i32 {sT2}, {sKS}, 2560')
        A(f's_add_u32 {sT2}, {sT2}, {L_WQ}')
        A(f's_add_u32 {sT3}, {sT1}, 2048')
        A(f's_cmp_eq_u32 {sPART}, 2')
        A(f's_cselect_b32 {sT1}, {sT3}, {sT1}')
        A(f's_cmp_eq_u32 {sPART}, 0')
        A(f's_cselect_b32 {sT1}, {sT2}, {sT1}')
        A('s_cselect_b64 vcc, -1, 0')
        A(f's_add_u32 {sT0}, {sT0}, {sT1}')
        self.compact_addr('v12', vi, vq, 'v13')
        A(f'v_cndmask_b32 v12, {vL16}, v12, vcc')
        F0 = 64
        for t in range(3):
            for k in range(4):
                A(f'v_cvt_pk_bf16_f32 v{F0 + 4 * t + k}, v{D0 + 8 * t + 2 * k}, v{D0 + 8 * t + 2 * k + 1}')
        A('s_mov_b64 exec, s[84:85]')
        A(f'buffer_store_dwordx4 {v(F0, 4)}, {vL16}, {WS}, {sT0} offen sc1')
        A('s_mov_b64 exec, -1')
        A(f'buffer_store_dwordx4 {v(F0 + 4, 4)}, {vL16}, {WS}, {sT0} offen offset:1024 sc1')
        A('s_mov_b64 exec, s[86:87]')
        A(f'buffer_store_dwordx4 {v(F0 + 8, 4)}, v12, {WS}, {sT0} offen offset:2048 sc1')
        A('s_mov_b64 exec, -1')
        for t in range(3):
            A(f'v_mfma_f32_16x16x32_bf16 {v(76 + 4 * t, 4)}, {v(ONES, 4)}, {v(F0 + 4 * t, 4)}, 0')
        for r in range(4):
            A(f'v_mov_b32 v{92 + r}, -1')
        A(f's_lshl_b32 {sT1}, {sHP}, 2')
        A(f's_add_u32 {sT1}, {sT1}, {sW}')
        A(f's_lshl_b32 {sT1}, {sT1}, 4')
        A(f's_add_u32 {sT1}, {sT1}, {sJ}')
        A(f's_lshl_b32 {sT1}, {sT1}, 10')
        A(f's_add_u32 {sT1}, {sT1}, {KVS}')
        A(f's_add_u32 {sT2}, {sT1}, 0x100000')
        A(f'buffer_store_dwordx4 v[92:95], {vL16}, {WS}, {sT1} offen sc1')
        A(f'buffer_store_dwordx4 v[92:95], {vL16}, {WS}, {sT2} offen sc1')
        sCSO = 's90'
        A(f's_mul_i32 {sCSO}, {sHP}, 60')
        A(f's_add_u32 {sCSO}, {sCSO}, {sU}')
        A(f's_lshl_b32 {sCSO}, {sCSO}, 8')
        A(f's_add_u32 {sT0}, {sCSO}, {CSP}')
        A('v_mov_b32 v77, v80')
        A('v_mov_b32 v78, v84')
        A('s_mov_b64 exec, 0xffff')
        A(f'buffer_store_dwordx4 v[76:79], {vL16}, {WS}, {sT0} offen sc1')
        A('s_mov_b64 exec, -1')
        sFLO = 's91'
        A(f's_lshl_b32 {sFLO}, s2, 7')
        A(f's_lshl_b32 {sT0}, {sW}, 3')
        A(f's_add_u32 {sFLO}, {sFLO}, {sT0}')
        A(f's_add_u32 {sT0}, {sFLO}, {FLA}')
        S0 = 96
        self.sel_mats(S0, 12)
        D1 = 104
        for t in range(2):
            for rt in range(2):
                A(f'v_mfma_f32_16x16x32_bf16 {v(D1 + 8 * t + 4 * rt, 4)}, {v(32 + 4 * rt, 4)}, {v(S0 + 4 * t, 4)}, 0')
        for t in range(4):
            for rt in range(2):
                A(f'v_mfma_f32_16x16x32_bf16 {v(D1 + 16 + 8 * t + 4 * rt, 4)}, {v(40 + 8 * (t >> 1) + 4 * rt, 4)}, '
                  f'{v(S0 + 4 * (t & 1), 4)}, 0')
        for rt in range(2):
            A(f'v_mfma_f32_16x16x16_bf16 {v(D1 + 48 + 4 * rt, 4)}, {v(56 + 2 * rt, 2)}, {v(S0, 2)}, 0')
        self.flag_store(sT0, 0, device=True)
        self.stamp('flagA')
        F1 = 160
        for t in range(7):
            for k in range(4):
                A(f'v_cvt_pk_bf16_f32 v{F1 + 4 * t + k}, v{D1 + 8 * t + 2 * k}, v{D1 + 8 * t + 2 * k + 1}')
        sW1D, sDST2, sCS1, sFLB = 's98', 's99', 's100', 's101'
        A(f's_mul_i32 {sW1D}, {sHP}, 122880')
        A(f's_lshl_b32 {sT0}, {sKS}, 12')
        A(f's_lshl_b32 {sT1}, {sPART}, 11')
        A(f's_add_u32 {sT0}, {sT0}, {sT1}')
        A(f's_lshl_b32 {sT1}, {sKS}, 11')
        A(f's_add_u32 {sT1}, {sT1}, 81920')
        A(f's_cmp_eq_u32 {sPART}, 2')
        A(f's_cselect_b32 {sT0}, {sT1}, {sT0}')
        A(f's_add_u32 {sW1D}, {sW1D}, {sT0}')
        A(f's_add_u32 {sW1D}, {sW1D}, {W1}')
        A(f's_mov_b32 {sDST2}, {sDST}')
        A(f's_add_u32 {sCS1}, {sCSO}, {CSP1}')
        A(f's_add_u32 {sFLB}, {sFLO}, {FLB}')
        for t in range(2):
            A(f'v_mfma_f32_16x16x32_bf16 {v(188 + 4 * t, 4)}, {v(ONES, 4)}, {v(F1 + 4 * t, 4)}, 0')
        self.placement_check()
        self.role_offsets()
        self.srd(20, P_OUT, 2048 * 1280)
        self.publish_x(XQ, ST0, 0, tmp=12)
        self.stamp('xpub')
        A('v_mov_b32 v189, v192')
        A(f'buffer_store_dwordx4 {v(F1, 4)}, {vL16}, {WS}, {sW1D} offen sc1')
        A(f'buffer_store_dwordx4 {v(F1 + 4, 4)}, {vL16}, {WS}, {sW1D} offen offset:1024 sc1')
        for t in range(4):
            A(f'buffer_store_dwordx4 {v(F1 + 8 + 4 * t, 4)}, {vL16}, {WS}, {sDST2} offen offset:{1024 * t} sc1')
        A(f's_add_u32 {sDST2}, {sDST2}, 4096')
        A(f'buffer_store_dwordx4 {v(F1 + 24, 4)}, {vL16}, {WS}, {sDST2} offen sc1')
        A('s_mov_b64 exec, 0xffff')
        A(f'buffer_store_dwordx4 v[188:191], {vL16}, {WS}, {sCS1} offen sc1')
        A('s_mov_b64 exec, -1')
        self.srd(8, P_B1, 3072)
        self.srd(12, P_B2, 1280)
        A(f'v_bfe_u32 v12, v0, 2, 2')
        A('v_lshlrev_b32 v12, 3, v12')
        A('v_bfe_u32 v13, v0, 4, 1')
        A('v_lshl_add_u32 v12, v13, 2, v12')
        A('v_lshrrev_b32 v13, 5, v0')
        A('v_lshl_add_u32 v12, v13, 5, v12')
        A('v_and_b32 v13, 3, v0')
        A('v_add_lshl_u32 v12, v12, v13, 1')
        A('v_lshlrev_b32 v13, 1, v0')
        A(f's_mul_i32 {sT0}, {sC16}, 192')
        A(f'buffer_load_ushort v14, v12, {SA}, {sT0} offen')
        A(f'buffer_load_ushort v15, v12, {SA}, {sT0} offen offset:128')
        A(f's_mul_i32 {sT0}, {sC8}, 160')
        A(f's_bitcmp1_b32 {sC8}, 0')
        A(f's_cselect_b32 {sT1}, 32, 0')
        A(f's_cselect_b32 {sT2}, 0, 128')
        A(f's_add_u32 {sT1}, {sT1}, {sT0}')
        A(f's_add_u32 {sT2}, {sT2}, {sT0}')
        A(f'buffer_load_ushort v16, v12, {SB}, {sT1} offen')
        A(f'buffer_load_ushort v17, v13, {SB}, {sT2} offen')
        A('v_lshlrev_b32 v12, 2, v0')
        A(f'v_add_u32 v12, {L_B1}, v12')
        for k in range(4):
            A(f'v_lshlrev_b32 v{14 + k}, 16, v{14 + k}')
            A(f'ds_write_b32 v12, v{14 + k} offset:{256 * k}')
        self.flag_store(sFLB, 0, device=True)
        self.stamp('flagB')

    def compact_addr(self, dst, vi, vq, tmp):
        A = self.A
        A(f'v_lshrrev_b32 {dst}, 2, {vi}')
        A(f'v_lshl_add_u32 {dst}, {vq}, 2, {dst}')
        A(f'v_and_b32 {tmp}, 1, {vi}')
        A(f'v_lshl_add_u32 {dst}, {dst}, 1, {tmp}')
        A(f'v_lshlrev_b32 {dst}, 4, {dst}')

    def _read_counts(self):
        out = [f'buffer_load_dword v10, {vL16}, {SC}, 0 offen sc1', 's_waitcnt vmcnt(0)',
               f'v_readlane_b32 {sT5}, v10, 1']
        for x in range(8):
            out += [f'v_readlane_b32 {sT0}, v10, {2 * x}', f's_add_u32 {sT5}, {sT5}, {sT0}']
        return out

    def overflow_code(self):
        t = ['L_overflow:', f's_mov_b32 {sSLOW}, 1', f's_mov_b32 {sCNT}, 0x100000', 'L_overflow_wait:']
        t += self._read_counts()
        t += [f's_sub_u32 {sCNT}, {sCNT}, 1', 's_cbranch_scc1 L_end',
              f's_cmp_lt_u32 {sT5}, 256', 's_cbranch_scc1 L_overflow_wait',
              f's_sub_u32 {sT1}, {sR}, 32', f's_cmp_lt_u32 {sG}, 8', f's_cselect_b32 {sT1}, {sT1}, {sR}']
        for x in range(8):
            t += [f'v_readlane_b32 {sT0}, v10, {2 * x}', f's_max_u32 {sT0}, {sT0}, 32', f's_sub_u32 {sT0}, {sT0}, 32',
                  f's_cmp_gt_u32 {sG}, {x}', f's_cselect_b32 {sT0}, {sT0}, 0', f's_add_u32 {sT1}, {sT1}, {sT0}']
        for x in range(8):
            t += [f'v_readlane_b32 {sT0}, v10, {2 * x}', f's_min_u32 {sT0}, {sT0}, 32',
                  f's_add_u32 {sR}, {sT0}, {sT1}', f's_mov_b32 {sG}, {x}',
                  f's_cmp_lt_u32 {sR}, 32', 's_cbranch_scc1 L_have_role', f's_sub_u32 {sT1}, {sR}, 32']
        t += ['s_branch L_end']
        self.tail += t

    def placement_check(self):
        A = self.A
        A(f's_lshl_b32 {sT1}, {sG}, 1')
        A(f'v_readlane_b32 {sT0}, v10, {sT1}')
        A(f's_cmp_lt_u32 {sT0}, 32')
        A('s_cbranch_scc1 L_place_wait')
        A('L_placed:')
        t = ['L_place_wait:', f's_mov_b32 {sCNT}, 0x100000', 'L_place_loop:']
        t += self._read_counts()
        t += [f'v_readlane_b32 {sT0}, v10, {sT1}', f's_cmp_ge_u32 {sT0}, 32', 's_cbranch_scc1 L_placed',
              f's_sub_u32 {sCNT}, {sCNT}, 1', 's_cbranch_scc1 L_end',
              f's_cmp_lt_u32 {sT5}, 256', 's_cbranch_scc1 L_place_loop',
              f's_mov_b32 {sSLOW}, 1', 's_branch L_placed']
        self.tail += t

    def role_offsets(self):
        A = self.A
        A(f's_lshl_b32 {sT0}, {sG}, 1')
        A(f's_add_u32 {sT0}, {sT0}, {sTG2}')
        A(f's_lshl_b32 {sACT}, {sT0}, 20')
        A(f's_add_u32 {sACT}, {sACT}, {ACT}')
        A(f's_lshl_b32 {sT1}, {sC16}, 2')
        A(f's_add_u32 {sT1}, {sT1}, {sW}')
        A(f's_lshl_b32 {sKVLD}, {sT1}, 14')
        A(f's_add_u32 {sKVLD}, {sKVLD}, {KVS}')
        A(f's_lshl_b32 {sT0}, {sT0}, 10')
        A(f's_add_u32 {sKVST}, {sKVLD}, {sT0}')
        A(f's_mul_i32 {sXLD}, {sW}, 40960')
        A(f's_add_u32 {sXLD}, {sXLD}, {sACT}')
        A(f's_lshl_b32 {sSTLD}, {sW}, 11')
        A(f's_add_u32 {sSTLD}, {sSTLD}, {sACT}')
        A(f's_lshr_b32 {sT0}, {sC16}, 2')
        A(f's_and_b32 {sT1}, {sC16}, 3')
        A(f's_mul_i32 {sT2}, {sT0}, 5120')
        A(f's_add_u32 {sT2}, {sT2}, {sXLD}')
        A(f's_add_u32 {sT2}, {sT2}, {OB}')
        A(f's_lshl_b32 {sT3}, {sT1}, 10')
        A(f's_add_u32 {sOSTA}, {sT2}, {sT3}')
        A(f's_lshl_b32 {sT3}, {sT1}, 8')
        A(f's_add_u32 {sOSTB}, {sT2}, {sT3}')
        A(f's_add_u32 {sOSTB}, {sOSTB}, 4096')
        A(f's_lshr_b32 {sT2}, {sW}, 1')
        A(f's_lshl_b32 {sT2}, {sT2}, 2')
        A(f's_add_u32 {sT2}, {sT2}, {sT0}')
        A(f's_lshl_b32 {sT2}, {sT2}, 7')
        A(f's_and_b32 {sT4}, {sW}, 1')
        A(f's_lshl_b32 {sT3}, {sT1}, 1')
        A(f's_add_u32 {sT3}, {sT3}, {sT4}')
        A(f's_lshl_b32 {sT3}, {sT3}, 3')
        A(f's_add_u32 {sT5}, {sACT}, {FL}')
        A(f's_add_u32 {sFOST}, {sT2}, {sT3}')
        A(f's_add_u32 {sFOST}, {sFOST}, {sT5}')
        A(f's_mul_i32 {sHST}, {sW}, 98304')
        A(f's_mul_i32 {sT0}, {sC16}, 3072')
        A(f's_add_u32 {sHST}, {sHST}, {sT0}')
        A(f's_add_u32 {sHST}, {sHST}, {sACT}')
        A(f's_add_u32 {sHST}, {sHST}, {HB}')
        A(f's_lshl_b32 {sT0}, {sT4L}, 2')
        for n in range(4):
            A(f's_add_u32 {sT1}, {sW}, {n + 1}')
            A(f's_and_b32 {sT1}, {sT1}, 3')
            A(f's_add_u32 {sTT[n]}, {sT1}, {sT0}')
        A(f's_lshl_b32 {sFOLD}, {sTT[3]}, 7')
        A(f's_add_u32 {sFOLD}, {sFOLD}, {sT5}')
        A(f's_lshl_b32 {sFXLD}, {sW}, 7')
        A(f's_add_u32 {sFXLD}, {sFXLD}, {sT5}')
        A(f's_lshr_b32 {sT0}, {sTT[3]}, 1')
        A(f's_lshl_b32 {sT0}, {sT0}, 7')
        A(f's_lshl_b32 {sT1}, {sC8}, 1')
        A(f's_add_u32 {sT1}, {sT1}, {sT4}')
        A(f's_lshl_b32 {sT1}, {sT1}, 3')
        A(f's_add_u32 {sFXST}, {sT0}, {sT1}')
        A(f's_add_u32 {sFXST}, {sFXST}, {sT5}')
        A(f's_mul_i32 {sT0}, {sTT[3]}, 20480')
        A(f's_add_u32 {sT0}, {sT0}, {sACT}')
        A(f's_mul_i32 {sT1}, {sC8}, 2560')
        A(f's_add_u32 {sT0}, {sT0}, {sT1}')
        A(f's_bitcmp1_b32 {sC8}, 0')
        A(f's_cselect_b32 {sXSTA}, 512, 0')
        A(f's_cselect_b32 {sXSTH}, 0, 2048')
        A(f's_cselect_b32 {sT2}, 8, 0')
        A(f's_add_u32 {sXSTA}, {sXSTA}, {sT0}')
        A(f's_add_u32 {sXSTH}, {sXSTH}, {sT0}')
        A(f's_lshl_b32 {sSTST}, {sTT[3]}, 10')
        A(f's_lshr_b32 {sT1}, {sC8}, 1')
        A(f's_lshl_b32 {sT1}, {sT1}, 8')
        A(f's_add_u32 {sSTST}, {sSTST}, {sT1}')
        A(f's_add_u32 {sSTST}, {sSTST}, {sT2}')
        A(f's_add_u32 {sSTST}, {sSTST}, {sACT}')
        A(f's_mul_i32 {sWA}, {sC16}, 153600')
        A(f's_mul_i32 {sW1}, {sC16}, 122880')
        A(f's_add_u32 {sW1}, {sW1}, {W1}')
        A(f's_mul_i32 {sWO}, {sC8}, 102400')
        A(f's_mul_i32 {sT0}, {sW}, 25600')
        A(f's_add_u32 {sWO}, {sWO}, {sT0}')
        A(f's_add_u32 {sWO}, {sWO}, {WO}')
        A(f's_mul_i32 {sW2}, {sC8}, 245760')
        A(f's_mul_i32 {sT0}, {sW}, 61440')
        A(f's_add_u32 {sW2}, {sW2}, {sT0}')
        A(f's_add_u32 {sW2}, {sW2}, {W2}')

    def publish_x(self, buf, st, flag_idx, tmp):
        A = self.A
        A(f's_add_u32 {sT0}, {sXSTA}, {buf}')
        A(f's_add_u32 {sT1}, {sXSTH}, {buf}')
        A(f'buffer_store_dwordx4 {v(RES, 4)}, {vL16}, {WS}, {sT0} offen')
        A(f'buffer_store_dwordx4 {v(RES + 4, 4)}, {vL16}, {WS}, {sT0} offen offset:1024')
        A(f'v_and_b32 {v(tmp + 4)}, 0xf0, {vL16}')
        A(f'v_lshrrev_b32 {v(tmp + 5)}, 9, {vL16}')
        A(f'v_lshl_add_u32 {v(tmp + 4)}, {v(tmp + 5)}, 8, {v(tmp + 4)}')
        A(f'v_bfe_u32 {v(tmp + 5)}, {vL16}, 8, 1')
        A(f'v_lshl_add_u32 {v(tmp + 4)}, {v(tmp + 5)}, 3, {v(tmp + 4)}')
        A(f'buffer_store_dwordx2 {v(RES + 8, 2)}, {v(tmp + 4)}, {WS}, {sT1} offen')
        A(f'v_mov_b32 {v(tmp + 5)}, 0x3f803f80')
        A(f'v_mov_b32 {v(tmp)}, 0')
        A(f'v_mov_b32 {v(tmp + 1)}, 0')
        for r in range(10):
            A(f'v_dot2c_f32_bf16 {v(tmp)}, {v(RES + r)}, {v(tmp + 5)}')
            A(f'v_dot2c_f32_bf16 {v(tmp + 1)}, {v(RES + r)}, {v(RES + r)}')
        A(self.rowsum4([tmp, tmp + 1], tmp + 2))
        A(f's_add_u32 {sT0}, {sSTST}, {st}')
        A('s_mov_b64 exec, 0xffff')
        A(f'buffer_store_dwordx2 {v(tmp, 2)}, {vL16}, {WS}, {sT0} offen')
        A(f's_add_u32 {sT0}, {sFXST}, {(flag_idx // 4) * 4096}')
        self.flag_store(sT0, (flag_idx % 4) * 1024)

    def stats_loads(self, st, tmp):
        return [f's_add_u32 {sT2}, {sSTLD}, {st}',
                f'buffer_load_dwordx4 {v(tmp, 4)}, {vL16}, {WS}, {sT2} offen sc1',
                f'buffer_load_dwordx4 {v(tmp + 4, 4)}, {vL16}, {WS}, {sT2} offen offset:1024 sc1']

    def stats_math(self, tmp):
        o = []
        for s in range(2):
            o.append(f'v_add_f32 {v(vNM + s)}, {v(tmp + 4 * s)}, {v(tmp + 4 * s + 2)}')
            o.append(f'v_add_f32 {v(vRS + s)}, {v(tmp + 4 * s + 1)}, {v(tmp + 4 * s + 3)}')
        o += self.rowsum4([vNM, vNM + 1, vRS, vRS + 1], tmp)
        for s in range(2):
            o.append(f'v_mul_f32 {v(vNM + s)}, 0xbacccccd, {v(vNM + s)}')
            o.append(f'v_mul_f32 {v(vRS + s)}, 0x3acccccd, {v(vRS + s)}')
        for s in range(2):
            o.append(f'v_fma_f32 {v(vRS + s)}, -{v(vNM + s)}, {v(vNM + s)}, {v(vRS + s)}')
        for s in range(2):
            o.append(f'v_max_f32 {v(vRS + s)}, 0, {v(vRS + s)}')
        for s in range(2):
            o.append(f'v_add_f32 {v(vRS + s)}, 0x3727c5ac, {v(vRS + s)}')
        for s in range(2):
            o.append(f'v_rsq_f32 {v(vRS + s)}, {v(vRS + s)}')
        return o

    def colsum_table(self, src, sidx, table, tiles, tmp):
        A = self.A
        self.lane_iq(v(tmp), v(tmp + 1))
        A(f'v_mul_u32_u24 {v(tmp + 1)}, 3840, {v(tmp + 1)}')
        A(f'v_lshl_add_u32 {v(tmp + 1)}, {v(tmp)}, 4, {v(tmp + 1)}')
        A(f's_mul_i32 {sT0}, {sidx}, 15360')
        A(f's_min_u32 {sT2}, {sW}, 2')
        A(f's_lshl_b32 {sT1}, {sT2}, 8')
        A(f's_add_u32 {sT0}, {sT0}, {sT1}')
        A(f's_add_u32 {sT0}, {sT0}, {src}')
        for k in range(5):
            A(f'buffer_load_dwordx4 {v(tmp + 4 + 4 * k, 4)}, {v(tmp + 1)}, {WS}, {sT0} offen offset:{768 * k} sc1')
        return lambda: self._colsum_finish(table, tiles, tmp)

    def _colsum_finish(self, table, tiles, tmp):
        A = self.A
        n = len(tiles[0])
        for k in range(1, 5):
            for t in range(n):
                A(f'v_add_f32 {v(tmp + 4 + t)}, {v(tmp + 4 + t)}, {v(tmp + 4 + 4 * k + t)}')
        A(self.rowsum4([tmp + 4 + t for t in range(n)], tmp + 8))
        A(f's_min_u32 {sT2}, {sW}, 2')
        A(f's_cmp_eq_u32 {sT2}, 1')
        A(f's_cselect_b32 {sT0}, {table + 64 * tiles[1][0][0]}, {table + 64 * tiles[0][0][0]}' if False else
          f's_mov_b32 {sT0}, {table + 64 * tiles[0][0][0]}')
        A(f's_cselect_b32 {sT0}, {table + 64 * tiles[1][0][0]}, {sT0}')
        A(f's_cmp_eq_u32 {sT2}, 2')
        A(f's_cselect_b32 {sT0}, {table + 64 * tiles[2][0][0]}, {sT0}')
        A(f'v_lshl_add_u32 {v(tmp)}, {v(tmp)}, 2, {sT0}')
        A('s_mov_b32 exec_hi, 0')
        for t in range(n):
            masks = [tiles[p][t][1] for p in range(3)]
            A(f's_mov_b32 exec_lo, {masks[0]:#x}')
            for p in (1, 2):
                if masks[p] != masks[0]:
                    A(f's_cmp_eq_u32 {sT2}, {p}')
                    A(f's_cselect_b32 exec_lo, {masks[p]:#x}, exec_lo')
            A(f'ds_write_b32 {v(tmp)}, {v(tmp + 4 + t)} offset:{64 * t}')
        A('s_mov_b64 exec, -1')

    def lds_pass(self, ntile, acc, wreads, ring, slots, look=3):
        n = 20 * ntile
        mf = []
        for f in range(min(look, n)):
            self.A(wreads[f](ring[f % len(ring)]))
        for f in range(n):
            ks, t = divmod(f, ntile)
            if f + look < n:
                slots[2 * f + 1].insert(0, wreads[f + look](ring[(f + look) % len(ring)]))
            for s in range(2):
                d = v(acc + (2 * t + s) * 4, 4)
                mf.append(f'v_mfma_f32_16x16x32_bf16 {d}, {ring[f % len(ring)]}, {v((2 * ks + s) * 4, 4)}, '
                          f'{d if ks else 0}')
        self.run(mf, slots)

    def lds_bases(self):
        return [f'v_add_u32 {vA0}, 0x10000, {vL16}', f'v_add_u32 {vA1}, 0x20000, {vL16}']

    @staticmethod
    def lds_read(off):
        base = (vL16, vA0, vA1)[off >> 16]
        return lambda d: f'ds_read_b128 {d}, {base} offset:{off & 0xffff}'

    def x_loads(self, buf):
        t0 = self.frag_loads([v(8 * ks, 4) for ks in range(20)], sXLD, [buf + 1024 * ks for ks in range(20)], 'sc1', tmp=sT3)
        t1 = self.frag_loads([v(8 * ks + 4, 4) for ks in range(20)], sXLD, [buf + 20480 + 1024 * ks for ks in range(20)],
                             'sc1', tmp=sT4)
        return [g for p in zip(t0, t1) for g in p]

    def softmax_pair(self, src, em, rs, tmp):
        A = self.A
        m, mn, al = tmp, tmp + 1, tmp + 2
        A(f'v_max3_f32 {v(m)}, {v(src[0])}, {v(src[1])}, {v(src[2])}')
        A(f'v_min3_f32 {v(mn)}, {v(src[0])}, {v(src[1])}, {v(src[2])}')
        for k in range(3, 19, 2):
            A(f'v_max3_f32 {v(m)}, {v(m)}, {v(src[k])}, {v(src[k + 1])}')
            A(f'v_min3_f32 {v(mn)}, {v(mn)}, {v(src[k])}, {v(src[k + 1])}')
        A(f'v_mul_f32 {v(al)}, 0x3fb8aa3b, {v(rs)}')
        A(f'v_max_f32 {v(m)}, {v(m)}, {v(src[19])}')
        A(f'v_min_f32 {v(mn)}, {v(mn)}, {v(src[19])}')
        for k in range(0, 20, 2):
            A(f'v_pk_add_f32 {v(em + k, 2)}, {v(m, 2)}, {v(src[k], 2)} op_sel:[1,0] op_sel_hi:[1,1] neg_lo:[0,1] neg_hi:[0,1]')
            A(f'v_pk_add_f32 {v(src[k], 2)}, {v(src[k], 2)}, {v(m, 2)} op_sel:[0,0] op_sel_hi:[1,0] neg_lo:[0,1] neg_hi:[0,1]')
        for k in range(0, 20, 2):
            A(f'v_pk_mul_f32 {v(em + k, 2)}, {v(em + k, 2)}, {v(al, 2)} op_sel_hi:[1,0]')
            A(f'v_pk_mul_f32 {v(src[k], 2)}, {v(src[k], 2)}, {v(al, 2)} op_sel_hi:[1,0]')
        for k in range(20):
            A(f'v_exp_f32 {v(src[k])}, {v(src[k])}')
            A(f'v_exp_f32 {v(em + k)}, {v(em + k)}')
        sp, sm = tmp, tmp + 2
        A(f'v_pk_add_f32 {v(sp, 2)}, {v(src[0], 2)}, {v(src[2], 2)}')
        A(f'v_pk_add_f32 {v(sm, 2)}, {v(em, 2)}, {v(em + 2, 2)}')
        for k in range(4, 20, 2):
            A(f'v_pk_add_f32 {v(sp, 2)}, {v(sp, 2)}, {v(src[k], 2)}')
            A(f'v_pk_add_f32 {v(sm, 2)}, {v(sm, 2)}, {v(em + k, 2)}')
        A(f'v_add_f32 {v(sp)}, {v(sp)}, {v(sp + 1)}')
        A(f'v_add_f32 {v(sm)}, {v(sm)}, {v(sm + 1)}')
        A(f'v_rcp_f32 {v(sp)}, {v(sp)}')
        A(f'v_rcp_f32 {v(sm)}, {v(sm)}')
        for k in range(0, 20, 2):
            A(f'v_pk_mul_f32 {v(src[k], 2)}, {v(src[k], 2)}, {v(sp, 2)} op_sel_hi:[1,0]')
            A(f'v_pk_mul_f32 {v(em + k, 2)}, {v(em + k, 2)}, {v(sm, 2)} op_sel_hi:[1,0]')

    def mean_fix_swap(self, acc, nvals, cs):
        A = self.A
        reg = lambda s, n: acc + (2 * (n >> 2) + s) * 4 + (n & 3)
        for n in range(0, nvals, 2):
            for s in range(2):
                A(f'v_pk_fma_f32 {v(reg(s, n), 2)}, {v(cs + n, 2)}, {v(vNM, 2)}, {v(reg(s, n), 2)} '
                  f'op_sel:[0,{s},0] op_sel_hi:[1,{s},1]')
        for n in range(nvals):
            A(f'v_permlane16_swap_b32 {v(reg(0, n))}, {v(reg(1, n))}')
        return reg

    def qkv(self, L):
        A = self.A
        ring = [a(240 + 4 * k, 4) for k in range(4)] + [v(240 + 4 * k, 4) for k in range(2)]
        A(f's_add_u32 {sT0}, {sFXLD}, {L * 4096}')
        self.poll(vL8, sT0, 0, 0xffff, T)
        self.stamp(f'x_in{L}')
        xl = self.x_loads(XQ)
        A(f's_mul_i32 {sWL}, {sW}, 5120')
        A(f's_add_u32 {sT5}, {sWA}, {sWL}')
        slots = defaultdict(list)
        if L == 0:
            A(self.stats_loads(ST0, T))
            A(xl)
            A(self.stats_math(T))
            A(f'v_lshrrev_b32 {vA0}, 5, {vL8}')
            A(f'v_lshlrev_b32 {vA0}, 7, {vA0}')
            A(f'v_and_b32 {vA1}, 24, {vL8}')
            A(f'v_add_u32 {vA0}, {vA0}, {vA1}')
            A(f's_lshl_b32 {sT0}, {sC16}, 11')
            A(f's_add_u32 {sT0}, {sT0}, {FLA}')
            self.poll(vA0, sT0, 0, (1 << 64) - 1, T, local=False)
            self.stamp('w_in')
            for c in range(5):
                A(self.dma(sT5, sWL, [20480 * c + 1024 * k for k in range(5)], f'wkv{c}'))
            lo2, hi2 = 0x3333, 0xcccc
            fin = self.colsum_table(CSP, sC16, L_CSQ,
                                    [[(5, 0xffff), (6, 0xffff), (7, 0xffff)], [(0, 0xffff), (1, 0xffff), (2, lo2)],
                                     [(2, hi2), (3, 0xffff), (4, 0xffff)]], ACC)
            fin()
            A(self.lds_bases())
            A.wait_lds()
            A('s_barrier')
        else:
            A(self.stats_loads(ST0, T))
            A(xl[:6])
            A(self.lds_bases())
            A('s_barrier')
            self.spread(slots, xl[6:], 0, 5)
            self.spread(slots, self.stats_math(T), 12, 2)
        A(f's_mul_i32 {sWL}, {sW}, 13312')
        A(f's_min_u32 {sWL}, {sWL}, {51200 - 13312}')
        A(f's_add_u32 {sWL}, {sWL}, {L_WQ}')
        A(f's_add_u32 {sT5}, {sWA}, {sWL}')
        self.spread(slots, self.dma(sT5, sWL, [1024 * k for k in range(13)], 'wq'), 2 if L == 0 else 172, 2)
        self.lds_pass(5, ACC, [self.lds_read(1024 * f) for f in range(100)], ring, slots)
        self.stamp(f'pass1_{L}')
        A(f'v_lshrrev_b32 {vA2}, 8, {vL16}')
        A(f'v_lshlrev_b32 {vA2}, 4, {vA2}')
        A(f'v_add_u32 {vA2}, {L_CSQ}, {vA2}')
        for t in range(5):
            A(f'ds_read_b128 {v(T + 4 * t, 4)}, {vA2} offset:{64 * t}')
        self.smask(90, lanemask(lambda l: (l >> 4) & 1))
        A(f'v_cndmask_b32 {v(vRS)}, {v(vRS)}, {v(vRS + 1)}, s[90:91]')
        reg = self.mean_fix_swap(ACC, 20, T)
        A('s_barrier')
        A(f's_mul_i32 {sWL}, {sW}, 15360')
        A(f's_add_u32 {sT5}, {sW1}, {sWL}')
        if L == 0:
            A(f'v_lshrrev_b32 {vA0}, 5, {vL8}')
            A(f'v_lshlrev_b32 {vA0}, 7, {vA0}')
            A(f'v_and_b32 {vA1}, 24, {vL8}')
            A(f'v_add_u32 {vA0}, {vA0}, {vA1}')
            A(f's_lshl_b32 {sT0}, {sC16}, 11')
            A(f's_add_u32 {sT0}, {sT0}, {FLB}')
            self.poll(vA0, sT0, 0, (1 << 64) - 1, 200, local=False)
            A(f's_lshl_b32 {sT0}, {sC8}, 12')
            A(f's_add_u32 {sT0}, {sT0}, {FLB}')
            self.poll(vA0, sT0, 0, (1 << 64) - 1, 200, local=False)
            self.poll(vA0, sT0, 2048, (1 << 64) - 1, 200, local=False)
        A(self.dma(sT5, sWL, [1024 * k for k in range(15)], 'w1a'))
        src = [reg(0, n) for n in range(10)] + [reg(1, n) for n in range(10)]
        vv = [reg(0, n) for n in range(10, 20)] + [reg(1, n) for n in range(10, 20)]
        self.softmax_pair(src, T, vRS, 200)
        for k in range(9, -1, -1):
            A(f'v_cvt_pk_bf16_f32 {v(T + 10 + k)}, {v(T + 2 * k)}, {v(T + 2 * k + 1)}')
        for k in range(10):
            A(f'v_cvt_pk_bf16_f32 {v(T + k)}, {v(src[2 * k])}, {v(src[2 * k + 1])}')
        A(f'v_bfe_u32 {vA0}, {vL16}, 4, 5')
        A(f's_lshl_b32 {sT0}, {sW}, 5')
        A(f'v_add_u32 {vA0}, {sT0}, {vA0}')
        A(f'v_mul_u32_u24 {vA0}, {PV_PITCH}, {vA0}')
        A(f'v_lshrrev_b32 {vA2}, 9, {vL16}')
        A(f'v_mul_u32_u24 {vA1}, 48, {vA2}')
        A(f'v_mul_u32_u24 {vA2}, 80, {vA2}')
        A(f'v_add_u32 {vA1}, {vA1}, {vA0}')
        A(f'v_add_u32 {vA0}, {vA2}, {vA0}')
        for k in range(5):
            A(f'ds_write_b128 {vA0}, {v(T + 4 * k, 4)} offset:{L_PV + 16 * k}')
        for k in range(0, 20, 2):
            A(f'v_pk_mul_f32 {v(vv[k], 2)}, {v(vv[k], 2)}, {v(vRS, 2)} op_sel_hi:[1,0]')
        for k in range(10):
            A(f'v_cvt_pk_bf16_f32 {v(ACC + k)}, {v(vv[2 * k])}, {v(vv[2 * k + 1])}')
        A(f'v_mov_b32 {v(ACC + 10)}, 0x3f80')
        A(f'v_mov_b32 {v(ACC + 11)}, 0')
        for k in range(3):
            A(f'ds_write_b128 {vA1}, {v(ACC + 4 * k, 4)} offset:{L_PV + 160 + 16 * k}')
        A(f'v_lshrrev_b32 {vA0}, 9, {vL16}')
        A(f'v_bfe_u32 {vA1}, {vL16}, 6, 2')
        A(f'v_lshl_add_u32 {vA0}, {vA0}, 3, {vA1}')
        A(f'v_mul_u32_u24 {vA0}, {PV_PITCH}, {vA0}')
        A(f'v_bfe_u32 {vA1}, {vL16}, 8, 1')
        A(f'v_bfe_u32 {vA2}, {vL16}, 4, 2')
        A(f'v_lshl_add_u32 {vA2}, {vA1}, 2, {vA2}')
        A(f'v_min_u32 {vA1}, 5, {vA2}')
        A(f'v_min_u32 {vA2}, 4, {vA2}')
        A(f'v_lshl_add_u32 {vA1}, {vA1}, 3, {vA0}')
        A(f'v_lshl_add_u32 {vA0}, {vA2}, 3, {vA0}')
        A(f's_mul_i32 {sT0}, {sW}, 40')
        A(f's_add_u32 {sT0}, {sT0}, {L_PV}')
        A(f's_lshr_b32 {sT1}, {sW}, 1')
        A(f's_mul_i32 {sT1}, {sT1}, 48')
        A(f's_add_u32 {sT1}, {sT1}, {L_PV + 160}')
        A(f'v_add_u32 {vA0}, {sT0}, {vA0}')
        A(f'v_add_u32 {vA1}, {sT1}, {vA1}')
        A.wait_tag('wq')
        A.wait_lds()
        A('s_barrier')
        self.stamp(f'kepi{L}')
        KD, KR = ACC, ACC + 16
        def trs(s):
            b = KR + 8 * (s % 4)
            o = 16 * s * PV_PITCH
            return [f'ds_read_b64_tr_b16 {v(b, 2)}, {vA0} offset:{o}',
                    f'ds_read_b64_tr_b16 {v(b + 2, 2)}, {vA0} offset:{o + 4 * PV_PITCH}',
                    f'ds_read_b64_tr_b16 {v(b + 4, 2)}, {vA1} offset:{o}',
                    f'ds_read_b64_tr_b16 {v(b + 6, 2)}, {vA1} offset:{o + 4 * PV_PITCH}']
        for s in range(3):
            A(trs(s))
        for s in range(8):
            b = KR + 8 * (s % 4)
            A(f'v_mfma_f32_32x32x16_bf16 {v(KD, 16)}, {v(b, 4)}, {v(b + 4, 4)}, {v(KD, 16) if s else 0}')
            if s + 3 < 8:
                A(trs(s + 3))
        A(f'v_bfe_u32 {vA0}, {vL16}, 4, 5')
        A(f'v_mul_u32_u24 {vA0}, 40, {vA0}')
        A(f'v_lshrrev_b32 {vA1}, 9, {vL16}')
        A(f'v_lshl_add_u32 {vA0}, {vA1}, 3, {vA0}')
        A(f's_add_u32 {sT0}, {sKVST}, {L * 0x100000}')
        for k in range(6):
            A(f'v_cvt_pk_bf16_f32 {v(T + k)}, {v(KD + 2 * k)}, {v(KD + 2 * k + 1)}')
        for k in range(6):
            A(f'v_min_u32 {v(T + k)}, -2, {v(T + k)}')
        A(self.exec_set(lanemask(lambda l: (l & 31) < 22)))
        A(f'buffer_store_dwordx2 {v(T, 2)}, {vA0}, {WS}, {sT0} offen sc1')
        A(f'buffer_store_dwordx2 {v(T + 2, 2)}, {vA0}, {WS}, {sT0} offen offset:16 sc1')
        A('s_mov_b32 exec_hi, 0')
        A(f'buffer_store_dwordx2 {v(T + 4, 2)}, {vA0}, {WS}, {sT0} offen offset:32 sc1')
        A('s_mov_b64 exec, -1')
        self.stamp(f'kvpub{L}')
        QA = 164
        self.lane_iq(v(T), v(T + 1))
        self.compact_addr(vA2, v(T), v(T + 1), v(T + 2))
        A(f'v_add_u32 {vA2}, {L_WQ}, {vA2}')
        A(f'v_add_u32 {vA0}, {L_WQ}, {vL16}')
        A(f'v_min_u32 {vA1}, {54 * 16}, {vL16}')
        wr = []
        for ks in range(20):
            for t in range(3):
                base = vA2 if t == 2 else vA0
                wr.append(lambda d, base=base, o=2560 * ks + 1024 * t: f'ds_read_b128 {d}, {base} offset:{o}')
        kvl = []
        for p in range(16):
            g = [f's_add_u32 {sT2}, {sKVLD}, {L * 0x100000 + 4096 * (p // 4)}'] if p % 4 == 0 else []
            kvl.append(g + [f'buffer_load_dwordx4 {v(4 * p, 4)}, {vA1}, {WS}, {sT2} offen offset:{1024 * (p % 4)} sc1'])
        slots = defaultdict(list)
        self.spread(slots, kvl, 64, 2)
        self.lds_pass(3, QA, wr, ring, slots)
        self.stamp(f'pass2_{L}')
        A(f'v_lshrrev_b32 {vA2}, 8, {vL16}')
        A(f'v_lshlrev_b32 {vA2}, 4, {vA2}')
        A(f'v_add_u32 {vA2}, {L_CSQ + 320}, {vA2}')
        for t in range(3):
            A(f'ds_read_b128 {v(188 + 4 * t, 4)}, {vA2} offset:{64 * t}')
        WOR = 64
        wol = self.frag_loads([v(WOR + 4 * f, 4) for f in range(25)], sWO, [1024 * f for f in range(25)], 'sc1')
        A(wol)
        reg = self.mean_fix_swap(QA, 10, 188)
        src = [reg(0, n) for n in range(10)] + [reg(1, n) for n in range(10)]
        self.softmax_pair(src, T, vRS, 188)
        order = [0, 1, 5, 6, 2, 3, 7, 8, 4, 9]
        for k in order:
            A(f'v_cvt_pk_bf16_f32 {v(188 + k)}, {v(src[2 * k])}, {v(src[2 * k + 1])}')
        for k in range(10):
            A(f'v_cvt_pk_bf16_f32 {v(198 + k)}, {v(T + 2 * k)}, {v(T + 2 * k + 1)}')
        PQ = 188
        self.stamp(f'qepi{L}')
        S0, SD = T, T + 8
        self.sel_mats(S0, T + 16)
        again, good = A.label('L_kvsum'), A.label('L_kvok')
        A(f's_mov_b32 {sCNT}, 0x40000')
        A.wait_vm()
        A(f'{again}:')
        for p in range(16):
            for t in range(2):
                d = v(SD + 4 * t, 4)
                A(f'v_mfma_f32_16x16x32_bf16 {d}, {v(S0 + 4 * t, 4)}, {v(4 * p, 4)}, {d if p else 0}')
        A(f'v_cmp_u_f32 vcc, {v(SD + 4)}, {v(SD + 4)}')
        retry = A.label('L_kvretry')
        A(f's_cbranch_vccnz {retry}')
        A(f'{good}:')
        t_ = [f'{retry}:']
        t_.append(f'v_max3_u32 {v(T + 16)}, v0, v1, v2')
        for r in range(3, 63, 2):
            t_.append(f'v_max3_u32 {v(T + 16)}, {v(T + 16)}, v{r}, v{r + 1}')
        t_.append(f'v_max_u32 {v(T + 16)}, {v(T + 16)}, v63')
        t_.append(f'v_cmp_eq_u32 vcc, -1, {v(T + 16)}')
        t_.append(f's_cbranch_vccz {good}')
        t_.append(f's_sub_u32 {sCNT}, {sCNT}, 1')
        t_.append(f's_cbranch_scc1 {good}')
        for g in kvl:
            t_ += g
        t_ += ['s_waitcnt vmcnt(0)', f's_branch {again}']
        self.tail += t_
        for k in range(4):
            A(f'v_cvt_pk_bf16_f32 {v(T + 16 + k)}, {v(SD + 2 * k)}, {v(SD + 2 * k + 1)}')
        A(f's_mul_i32 {sT0}, {sW}, 880')
        A(f's_add_u32 {sT0}, {sT0}, {L_KVI}')
        A(f'v_add_u32 {vA0}, {sT0}, {vA1}')
        A(f'ds_write_b128 {vA0}, {v(T + 16, 4)}')
        A(f'v_bfe_u32 {v(T)}, {vL16}, 7, 2')
        A(f'v_bfe_u32 {v(T + 1)}, {vL16}, 4, 2')
        A(f'v_lshl_add_u32 {v(T)}, {v(T)}, 2, {v(T + 1)}')
        A(f'v_add_u32 {v(T + 1)}, 16, {v(T)}')
        A(f'v_min_u32 {v(T + 1)}, 21, {v(T + 1)}')
        self.smask(90, lanemask(lambda l: ((l >> 2) & 1) == (l >> 5)))
        A(f'v_cndmask_b32 {v(T)}, 21, {v(T)}, s[90:91]')
        A(f'v_cndmask_b32 {v(T + 1)}, 21, {v(T + 1)}, s[90:91]')
        A(f'v_lshrrev_b32 {v(T + 2)}, 9, {vL16}')
        A(f'v_mul_u32_u24 {v(T + 2)}, 1760, {v(T + 2)}')
        A(f'v_add_u32 {v(T + 2)}, {L_KVI}, {v(T + 2)}')
        A(f'v_mad_u32_u24 {vA0}, {v(T)}, 40, {v(T + 2)}')
        A(f'v_mad_u32_u24 {vA1}, {v(T + 1)}, 40, {v(T + 2)}')
        A.wait_lds()
        A('s_barrier')
        self.stamp(f'kvsum{L}')
        co = lambda cc: (cc // 5) * 110 + (cc % 5)
        for s in range(5):
            for tl in (1, 0):
                A(f'ds_read2_b64 {v(8 * s + 4 * tl, 4)}, {(vA0, vA1)[tl]} offset0:{co(2 * s)} offset1:{co(2 * s + 1)}')
        A(f's_mul_i32 {sWL}, {sW}, 8192')
        A(f's_min_u32 {sWL}, {sWL}, {30720 - 8192}')
        A(f's_add_u32 {sWL}, {sWL}, 61440')
        A(f's_add_u32 {sT5}, {sW1}, {sWL}')
        ND = (40, T)
        for s in range(5):
            for tl in (1, 0):
                d = v(ND[tl], 16)
                A(f'v_mfma_f32_32x32x16_bf16 {d}, {v(8 * s + 4 * tl, 4)}, {v(PQ + 4 * s, 4)}, {d if s else 0}')
        A(f'v_bfe_u32 {vA2}, {vL16}, 8, 1')
        A(f'v_mul_u32_u24 {vA2}, 20480, {vA2}')
        A(f'v_and_b32 {vA0}, 0xf0, {vL16}')
        A(f'v_add_u32 {vA2}, {vA2}, {vA0}')
        A(f'v_lshrrev_b32 {vA1}, 9, {vL16}')
        A(f'v_lshl_add_u32 {vA0}, {vA1}, 9, {vA2}')
        A(f'v_lshl_add_u32 {vA1}, {vA1}, 3, {vA2}')
        A(f'v_add_f32 {v(T + 4)}, 0x358637bd, {v(T + 4)}')
        A(f'v_rcp_f32 {v(T + 4)}, {v(T + 4)}')
        num = [40 + k for k in range(16)] + [T + k for k in range(4)]
        for k in range(0, 20, 2):
            A(f'v_pk_mul_f32 {v(num[k], 2)}, {v(num[k], 2)}, {v(T + 4, 2)} op_sel_hi:[1,0]')
        for k in range(10):
            A(f'v_cvt_pk_bf16_f32 {v(PQ + k)}, {v(num[2 * k])}, {v(num[2 * k + 1])}')
        A(f'buffer_store_dwordx4 {v(PQ, 4)}, {vA0}, {WS}, {sOSTA} offen')
        A(f'buffer_store_dwordx4 {v(PQ + 4, 4)}, {vA0}, {WS}, {sOSTA} offen offset:256')
        A(f'buffer_store_dwordx2 {v(PQ + 8, 2)}, {vA1}, {WS}, {sOSTB} offen')
        A(f's_add_u32 {sT0}, {sFOST}, {L * 4096}')
        self.flag_store(sT0, 1024)
        A(self.dma(sT5, sWL, [1024 * k for k in range(8)], 'w1a'))
        self.stamp(f'opub{L}')

    def splitk(self, L, which):
        A = self.A
        ffn = which == 'ffn2'
        nks = 12 if ffn else 5
        pitch = 49152 if ffn else 20480
        buf = HB if ffn else OB
        wreg = (lambda f: a(4 * f, 4)) if ffn else (lambda f: v(64 + 4 * f, 4))
        xring = [4 * k for k in range(40)] if ffn else [4 * k for k in range(16)] + [T + 4 * k for k in range(4)]
        accs = (164, 184)
        A(f's_mul_i32 {sT0}, {sW}, {nks * 1024}')
        A(f's_add_u32 {sT0}, {sT0}, {sACT}')
        for n in range(4):
            A(f's_mul_i32 {sLB[n]}, {sTT[n]}, {pitch}')
            A(f's_add_u32 {sLB[n]}, {sLB[n]}, {sT0}')
        A(f's_add_u32 {sT0}, {sFOLD}, {L * 4096}')
        self.poll(vL8, sT0, 3072 if ffn else 1024, 0xff, 204)
        self.stamp(f'{which}_in{L}')
        xl = []
        for n in range(4):
            xl += self.frag_loads([v(xring[(n * nks + k) % len(xring)], 4) for k in range(nks)], sLB[n],
                                  [buf + 1024 * k for k in range(nks)], 'sc1', tmp=sT3)
        look = 6
        A(xl[:look])
        slots = defaultdict(list)
        self.spread(slots, xl[look:], 1, 5)
        mf = []
        for n in range(4):
            for k in range(nks):
                x = v(xring[(n * nks + k) % len(xring)], 4)
                for j in range(5):
                    d = v(accs[n & 1] + 4 * j, 4)
                    mf.append(f'v_mfma_f32_16x16x32_bf16 {d}, {wreg(5 * k + j)}, {x}, {d if k else 0}')
        per = 5 * nks
        for n in range(3):
            g = [f's_and_b32 {sT0}, {sTT[n]}, 3', f's_mul_i32 {sT0}, {sT0}, 15360',
                 f's_add_u32 {sT0}, {sT0}, {L_SCR + 5120 * n}', f'v_add_u32 {vA0}, {sT0}, {vL16}']
            self.spread(slots, g, per * (n + 1), 1)
            self.spread(slots, [f'ds_write_b128 {vA0}, {v(accs[n & 1] + 4 * j, 4)} offset:{1024 * j}' for j in range(5)],
                        per * (n + 1) + 5, 1)
        if ffn and L == 0:
            A(f's_mul_i32 {sWL}, {sW}, 23552')
            A(f's_min_u32 {sWL}, {sWL}, {92160 - 23552}')
            A(f's_add_u32 {sT5}, {sWA}, {sWL}')
            self.spread(slots, self.dma(sT5, sWL, [1024 * k for k in range(23)], 'wkv'), 3, 10)
        if not ffn and L == 0:
            w2l = self.frag_loads([a(4 * f, 4) for f in range(60)], sW2, [1024 * f for f in range(60)], 'sc1', tmp=sT4)
            self.w2l = w2l
            self.spread(slots, w2l[:12], 73, 2)
        self.run(mf, slots)
        self.stamp(f'{which}_mm{L}')
        A(f's_mul_i32 {sT0}, {sW}, 15360')
        A(f's_add_u32 {sT0}, {sT0}, {L_SCR}')
        A(f'v_add_u32 {vA0}, {sT0}, {vL16}')
        A.wait_lds()
        A('s_barrier')
        PR = 64
        for k in range(15):
            A(f'ds_read_b128 {v(PR + 4 * k, 4)}, {vA0} offset:{1024 * k}')
        own = accs[1]
        if ffn:
            A(f'v_lshrrev_b32 {vA2}, 8, {vL16}')
            A(f'v_lshlrev_b32 {vA2}, 4, {vA2}')
            A(f'v_add_u32 {vA2}, {L_B2}, {vA2}')
            for j in range(5):
                A(f'ds_read_b128 {v(PR + 60 + 4 * j, 4)}, {vA2} offset:{64 * j}')
        for r in range(10):
            A(f'v_lshlrev_b32 {v(accs[0] + 2 * r)}, 16, {v(RES + r)}')
            A(f'v_and_b32 {v(accs[0] + 2 * r + 1)}, 0xffff0000, {v(RES + r)}')
        for n in range(4 if ffn else 3):
            for k in range(0, 20, 2):
                A(f'v_pk_add_f32 {v(own + k, 2)}, {v(own + k, 2)}, {v(PR + 20 * n + k, 2)}')
        for k in range(0, 20, 2):
            A(f'v_pk_add_f32 {v(own + k, 2)}, {v(own + k, 2)}, {v(accs[0] + k, 2)}')
        for r in range(10):
            A(f'v_cvt_pk_bf16_f32 {v(RES + r)}, {v(own + 2 * r)}, {v(own + 2 * r + 1)}')
        if ffn and L == 1:
            self.lane_iq(v(T), v(T + 1))
            A(f'v_mul_u32_u24 {v(T)}, 1280, {v(T)}')
            A(f'v_lshl_add_u32 {v(T + 2)}, {v(T + 1)}, 3, {v(T)}')
            A(f'v_lshl_add_u32 {v(T)}, {v(T + 1)}, 4, {v(T)}')
            A(f'buffer_store_dwordx4 {v(RES, 4)}, {v(T)}, {OUT}, {sNA} offen')
            A(f'buffer_store_dwordx4 {v(RES + 4, 4)}, {v(T)}, {OUT}, {sNA} offen offset:64')
            A(f'buffer_store_dwordx2 {v(RES + 8, 2)}, {v(T + 2)}, {OUT}, {sNB} offen')
            return
        if ffn:
            self.publish_x(XQ, ST0, 4 * (L + 1), tmp=T)
            A('s_barrier')
            A(f's_mul_i32 {sWL}, {sW}, 3072')
            A(f's_min_u32 {sWL}, {sWL}, {10240 - 3072}')
            A(f's_add_u32 {sWL}, {sWL}, 92160')
            A(f's_add_u32 {sT5}, {sWA}, {sWL}')
            A(self.dma(sT5, sWL, [1024 * k for k in range(3)], 'wkv'))
        else:
            self.publish_x(X1, ST1, 4 * L + 2, tmp=T)
            A('s_barrier')
            A(f's_mul_i32 {sWL}, {sW}, 8192')
            A(f's_min_u32 {sWL}, {sWL}, {30720 - 8192}')
            A(f's_add_u32 {sWL}, {sWL}, 92160')
            A(f's_add_u32 {sT5}, {sW1}, {sWL}')
            A(self.dma(sT5, sWL, [1024 * k for k in range(8)], 'w1b'))
        self.stamp(f'{which}_pub{L}')

    def ffn1(self, L):
        A = self.A
        ring = [a(240 + 4 * k, 4) for k in range(4)] + [v(240 + 4 * k, 4) for k in range(2)]
        if L == 0:
            full = 0xffff
            fin = self.colsum_table(CSP1, sC16, L_CS1, [[(2 * p, full), (2 * p + 1, full)] for p in range(3)], ACC)
            fin()
        A(f's_add_u32 {sT0}, {sFXLD}, {L * 4096}')
        self.poll(vL8, sT0, 2048, 0xffff, T)
        self.stamp(f'ffn1_in{L}')
        xl = self.x_loads(X1)
        A(self.stats_loads(ST1, T))
        A(xl[:6])
        A(self.lds_bases())
        A.wait_lds()
        A('s_barrier')
        slots = defaultdict(list)
        self.spread(slots, xl[6:], 0, 4)
        self.spread(slots, self.stats_math(T), 12, 2)
        self.lds_pass(4, ACC, [self.lds_read(1024 * f) for f in range(80)], ring, slots)
        slots = defaultdict(list)
        if L == 0:
            self.spread(slots, self.w2l[12:52], 0, 2)
        self.lds_pass(2, ACC + 32, [self.lds_read(81920 + 1024 * f) for f in range(40)], ring, slots)
        self.stamp(f'ffn1_mm{L}')
        A(f'v_lshrrev_b32 {vA2}, 8, {vL16}')
        A(f'v_lshlrev_b32 {vA2}, 4, {vA2}')
        A(f'v_add_u32 {vA2}, {L_CS1}, {vA2}')
        CS, BB, C = 0, 24, 48
        for t in range(6):
            A(f'ds_read_b128 {v(CS + 4 * t, 4)}, {vA2} offset:{64 * t}')
            A(f'ds_read_b128 {v(BB + 4 * t, 4)}, {vA2} offset:{L_B1 - L_CS1 + 64 * t}')
        A(f'v_pk_mul_f32 {v(vNM, 2)}, {v(vNM, 2)}, {v(vRS, 2)}')
        A(f's_add_u32 {sT1}, {sHST}, 49152')
        for m in range(3):
            for s in range(2):
                o = 96 + 8 * m + 4 * s
                for t in (2 * m, 2 * m + 1):
                    for k in (0, 2):
                        r = ACC + (2 * t + s) * 4 + k
                        c = C + 4 * (t & 1) + k
                        A(f'v_pk_fma_f32 {v(c, 2)}, {v(CS + 4 * t + k, 2)}, {v(vNM, 2)}, {v(BB + 4 * t + k, 2)} '
                          f'op_sel:[0,{s},0] op_sel_hi:[1,{s},1]')
                        A(f'v_pk_fma_f32 {v(r, 2)}, {v(r, 2)}, {v(vRS, 2)}, {v(c, 2)} op_sel:[0,{s},0] op_sel_hi:[1,{s},1]')
                        A(f'v_max_f32 {v(r)}, 0, {v(r)}')
                        A(f'v_max_f32 {v(r + 1)}, 0, {v(r + 1)}')
                        A(f'v_pk_mul_f32 {v(r, 2)}, {v(r, 2)}, {v(r, 2)}')
                        A(f'v_cvt_pk_bf16_f32 {v(o + 2 * (t & 1) + k // 2)}, {v(r)}, {v(r + 1)}')
                A(f'buffer_store_dwordx4 {v(o, 4)}, {vL16}, {WS}, {(sHST, sT1)[s]} offen offset:{1024 * m}')
        A(f's_add_u32 {sT0}, {sFOST}, {L * 4096}')
        self.flag_store(sT0, 3072)
        A('s_barrier')
        if L == 0:
            A(self.w2l[52:])
        self.stamp(f'ffn1_pub{L}')

    def finish(self):
        A = self.A
        A('L_finish:')
        A(f's_cmp_eq_u32 s2, 0')
        A(f's_cselect_b32 {sT0}, {EPO}, {OOB}' if False else f's_mov_b32 {sT1}, {EPO}')
        A(f's_cselect_b32 {sT0}, {sT1}, {OOB}')
        A('s_mov_b64 exec, 1')
        A(f'buffer_store_dword v220, off, {WS}, {sT0} sc1')
        A('s_mov_b64 exec, -1')
        if self.stamps:
            A('s_waitcnt vmcnt(0)')
            self.stamp('end')
            A(f's_lshl_b32 {sT0}, {sG}, 5')
            A(f's_add_u32 {sT0}, {sT0}, {sR}')
            A(f's_lshl_b32 {sT0}, {sT0}, 2')
            A(f's_add_u32 {sT0}, {sT0}, {sW}')
            A(f's_lshl_b32 {sT0}, {sT0}, 8')
            A(f's_add_u32 {sT0}, {sT0}, {STAMP}')
            A(f'v_lshrrev_b32 {vA0}, 2, {vL16}')
            A(f'buffer_store_dword {vSTAMP}, {vA0}, {WS}, {sT0} offen')
        A('s_endpgm')
        for t in self.tail:
            A(Inst(t if isinstance(t, str) else t.text, hidden=True))
        A('L_end:')
        A('s_endpgm')

    def build(self):
        self.prologue()
        self.maybe_stop('pro')
        for L in range(2):
            self.qkv(L)
            self.maybe_stop(f'qkv{L}')
            self.splitk(L, 'oproj')
            self.maybe_stop(f'oproj{L}')
            self.ffn1(L)
            self.maybe_stop(f'ffn1{L}')
            self.splitk(L, 'ffn2')
            self.maybe_stop(f'ffn2{L}')
        self.finish()
        return HEADER + self.A.text() + FOOTER


HEADER = f"""; Two interleaved (hedgehog linear attention, squared-ReLU FFN) layers in one persistent launch.
; @launch grid=(256,1,1) block=(256,1,1) lds={LDS_BYTES}
.amdgcn_target "amdgcn-amd-amdhsa--gfx950"
.text
.globl {NAME}_kernel
.p2align 8
.type {NAME}_kernel,@function
{NAME}_kernel:
"""

FOOTER = f"""
.section .rodata,"a"
.p2align 6
.amdhsa_kernel {NAME}_kernel
  .amdhsa_next_free_vgpr 512
  .amdhsa_next_free_sgpr 102
  .amdhsa_accum_offset 256
  .amdhsa_group_segment_fixed_size 0
  .amdhsa_kernarg_size 96
  .amdhsa_user_sgpr_count 2
  .amdhsa_user_sgpr_kernarg_segment_ptr 1
  .amdhsa_system_sgpr_workgroup_id_x 1
  .amdhsa_float_denorm_mode_32 3
.end_amdhsa_kernel
"""

if __name__ == '__main__':
    g = Gen()
    text = g.build()
    path = sys.argv[1] if len(sys.argv) > 1 else f'cdna_kernels/{NAME}.s'
    open(path, 'w').write(text)
    print('instructions', len(g.A.out), 'max vm in flight', g.A.max_vm)
```

```python
from mb import *
OPS = {
 'w128': lambda n: f'ds_write_b128 v2, v[{8+4*(n%8)}:{11+4*(n%8)}] offset:{1024*(n%8)}',
 'w64': lambda n: f'ds_write_b64 v3, v[{8+2*(n%8)}:{9+2*(n%8)}] offset:{512*(n%8)}',
 'w32': lambda n: f'ds_write_b32 v4, v{8+n%8} offset:{256*(n%8)}',
 'w2st64': lambda n: f'ds_write2st64_b32 v4, v{8+n%8}, v{16+n%8} offset0:{2*(n%8)} offset1:{2*(n%8)+1}',
 'r128': lambda n: f'ds_read_b128 v[{40+4*(n%8)}:{43+4*(n%8)}], v2 offset:{1024*(n%8)}',
 'barrier': lambda n: 's_barrier',
 'add2': lambda n: f'v_add_f32 v{40+n%8}, v{40+n%8}, v9\nv_add_f32 v{50+n%8}, v{50+n%8}, v9',
 'add2w': lambda n: f'v_add_f32 v{40+n%8}, v{40+n%8}, v9\nv_add_f32 v{50+n%8}, v{50+n%8}, v9\ns_waitcnt vmcnt(3)',
 'wadd2': lambda n: f's_waitcnt vmcnt(3)\nv_add_f32 v{40+n%8}, v{40+n%8}, v9\nv_add_f32 v{50+n%8}, v{50+n%8}, v9',
 'radd': lambda n: f'ds_read_b128 v[{60+4*(n%8)}:{63+4*(n%8)}], v2 offset:{1024*(n%8)}\nv_add_f32 v{50+n%8}, v{50+n%8}, v9',
 'radd2': lambda n: f'ds_read_b128 v[{60+4*(n%8)}:{63+4*(n%8)}], v2 offset:{1024*(n%8)}\nv_add_f32 v{50+n%8}, v{50+n%8}, v9\nv_add_f32 v{40+n%8}, v{40+n%8}, v9',
 'dsadd': lambda n: f'ds_add_f32 v4, v{8+n%8} offset:{256*(n%8)}',
}
def gen(op, every):
    L = []; A = L.append
    A('s_load_dwordx2 s[12:13], s[0:1], 0')
    A('v_lshrrev_b32 v1, 6, v0'); A('v_and_b32 v2, 63, v0'); A('v_readfirstlane_b32 s20, v1')
    A('v_lshlrev_b32 v1, 13, v1'); A('v_lshl_add_u32 v3, v2, 3, v1'); A('v_lshl_add_u32 v4, v2, 2, v1'); A('v_lshl_add_u32 v2, v2, 4, v1')
    for r in range(5, 200): A(f'v_mov_b32 v{r}, 0')
    A('s_mov_b32 s14, 0x100000'); A('s_mov_b32 s15, 0x20000')
    A('s_waitcnt lgkmcnt(0)')
    A('s_mov_b32 s21, 0'); A('s_barrier')
    A('L_out:')
    A('s_memtime s[28:29]'); A('s_waitcnt lgkmcnt(0)')
    n = 0
    for k in range(240):
        d = 120 + 4*(k % 10)
        if k % every == 1 % every:
            A(OPS[op](n)); n += 1
        A(f'v_mfma_f32_16x16x32_bf16 v[{d}:{d+3}], v[112:115], v[116:119], v[{d}:{d+3}]')
    A('s_waitcnt lgkmcnt(0)')
    A('s_memtime s[30:31]'); A('s_waitcnt lgkmcnt(0) vmcnt(0)')
    A('s_barrier')
    A('s_add_u32 s21, s21, 1'); A('s_cmp_lt_u32 s21, 3'); A('s_cbranch_scc1 L_out')
    A('s_sub_u32 s30, s30, s28'); A('v_mov_b32 v4, s30')
    A('s_lshl_b32 s3, s2, 2'); A('s_add_u32 s3, s3, s20'); A('s_lshl_b32 s3, s3, 2'); A('s_mov_b64 exec, 1')
    A('buffer_store_dword v4, off, s[12:15], s3'); A('s_waitcnt vmcnt(0)')
    return wrap('dw_kernel', '\n'.join(L), vgpr=256, block=256, grid=8, lds=84*1024)
cfgs = [(op, e) for op in OPS for e in (8, 4, 2, 1)]
if not ON_GPU:
    for op in OPS: assemble(gen(op, 4), 'dw_kernel', 1)
    print('ok'); raise SystemExit
out = DeviceBuffer(0x100000)
for op in OPS:
    msg = f'{op:8s}'
    for e in (8, 4, 2, 1):
        k = load(gen(op, e), 'dw_kernel', 1)
        k.launch((8,1,1), (256,1,1), pack_ptr_kernargs([out.ptr]), 84*1024); sync()
        r = out.to_numpy(np.uint32, (8, 4))
        msg += f'  every {e}: +{(np.median(r.max(1)) - 3872) / (240 // e):5.1f}'
        k.unload()
    print(msg)
```
